```python
import torch

def _softmax(x, axis=-1):
    return torch.softmax(x, dim=axis)

def _gelu(x):
    return torch.nn.functional.gelu(x, approximate='tanh')

def _silu(x):
    return torch.nn.functional.silu(x)

def _sigmoid(x):
    return torch.sigmoid(x)

def _layernorm(x, axis=-1, eps=1e-05):
    m = x.mean(dim=axis, keepdim=True)
    v = x.var(dim=axis, keepdim=True, unbiased=False)
    return (x - m) / torch.sqrt(v + eps)

def _scatter_add(tgt, idx, src, axis=0):
    return tgt.clone().index_add_(axis, idx, src)

def _segment_sum(src, seg, n):
    out = torch.zeros((n,) + src.shape[1:], dtype=src.dtype)
    return out.index_add_(0, seg, src)

def _pad(x, pw):
    flat = tuple((v for pair in reversed(pw) for v in pair))
    return torch.nn.functional.pad(x, flat)
kernel_name = 'sequential_preLN__memory_aug_recurrent_mem_tr__mixer_s_mlp__prompt'

def setup_inputs():

    _w = lambda a: (lambda t: t.to(torch.bfloat16) if t.is_floating_point() else t)(torch.as_tensor(a))

    def _A_setup():
        B, S, Dm = (1, 2048, 1024)
        H, Dh = (32, 128)
        M, seg = (8, 32)
        seg = min(seg, S)
        S = S // seg * seg
        return {'x': _w((lambda *s: torch.randn(*s, dtype=torch.bfloat16) * 0.05)(B, S, Dm)), 'mem0': _w((lambda *s: torch.randn(*s, dtype=torch.bfloat16) * 0.2)(B, M, Dm)), 'Wq': _w((lambda *s: torch.randn(*s, dtype=torch.bfloat16) * 1.6)(Dm, H, Dh) * Dm ** (-0.5)), 'Wk': _w((lambda *s: torch.randn(*s, dtype=torch.bfloat16) * 1.6)(Dm, H, Dh) * Dm ** (-0.5)), 'Wv': _w((lambda *s: torch.randn(*s, dtype=torch.bfloat16) * 0.2)(Dm, H, Dh) * Dm ** (-0.5)), 'Wo': _w((lambda *s: torch.randn(*s, dtype=torch.bfloat16) * 0.2)(H, Dh, Dm) * (H * Dh) ** (-0.5)), 'seg_len': seg}
    _A_in = _A_setup()

    def _B_setup():
        B, S, D, F = (1, 2048, 1024, 3584)
        return {'x': _w((lambda *s: torch.randn(*s, dtype=torch.bfloat16) * 0.05)(B, S, D)), 'w1': _w((lambda *s: torch.randn(*s, dtype=torch.bfloat16) * 0.8)(D, D) * D ** (-0.5)), 'w2': _w((lambda *s: torch.randn(*s, dtype=torch.bfloat16) * 0.8)(D, D) * D ** (-0.5)), 'w3': _w((lambda *s: torch.randn(*s, dtype=torch.bfloat16) * 0.8)(D, F) * D ** (-0.5)), 'w4': _w((lambda *s: torch.randn(*s, dtype=torch.bfloat16) * 0.8)(F, D) * F ** (-0.5))}
    _B_in = _B_setup()
    return {'A_x': _A_in['x'], 'A_mem0': _A_in['mem0'], 'A_Wq': _A_in['Wq'], 'A_Wk': _A_in['Wk'], 'A_Wv': _A_in['Wv'], 'A_Wo': _A_in['Wo'], 'A_seg_len': _A_in['seg_len'], 'B_x': _B_in['x'], 'B_w1': _B_in['w1'], 'B_w2': _B_in['w2'], 'B_w3': _B_in['w3'], 'B_w4': _B_in['w4']}

def reference(A_x, A_mem0, A_Wq, A_Wk, A_Wv, A_Wo, A_seg_len, B_x, B_w1, B_w2, B_w3, B_w4):

    def _A_ref(x, mem0, Wq, Wk, Wv, Wo, seg_len):
        B, S, Dm = x.shape
        H, Dh = (Wq.shape[1], Wq.shape[2])
        M = mem0.shape[1]
        scale = Dh ** (-0.5)
        n_seg = S // seg_len
        L = M + seg_len
        idx = torch.arange(L)
        mask = (idx[:, None] < M) | (idx[:, None] >= idx[None, :])
        mem = mem0
        outs = []
        for s in range(n_seg):
            xs = x[:, s * seg_len:(s + 1) * seg_len, :].clone()
            h = torch.concatenate([mem, xs], axis=1)
            q = torch.einsum('btd,dhe->bhte', h, Wq)
            k = torch.einsum('btd,dhe->bhte', h, Wk)
            v = torch.einsum('btd,dhe->bhte', h, Wv)
            scores = torch.einsum('bhqe,bhke->bhqk', q, k) * scale
            scores = torch.where(mask[None, None], scores, -1000000000.0)
            p = _softmax(scores, axis=-1)
            o = torch.einsum('bhqk,bhke->bhqe', p, v)
            o = torch.einsum('bhte,hed->btd', o, Wo)
            mem = o[:, :M, :].clone()
            outs.append(o[:, M:, :])
        return torch.concatenate(outs, axis=1)

    def _B_ref(x, w1, w2, w3, w4):
        B, S, D = x.shape
        h = _gelu(_layernorm(x, axis=-1) @ w1)
        c = D // 4
        g0 = _pad(h[:, :, 0 * c:1 * c], ((0, 0), (1, 0), (0, 0)))[:, :S, :]
        g1 = _pad(h[:, :, 1 * c:2 * c], ((0, 0), (0, 1), (0, 0)))[:, 1:, :]
        g2 = _pad(h[:, :, 2 * c:3 * c], ((0, 0), (2, 0), (0, 0)))[:, :S, :]
        g3 = _pad(h[:, :, 3 * c:], ((0, 0), (0, 2), (0, 0)))[:, 2:, :]
        hs = torch.concatenate([g0, g1, g2, g3], axis=-1) @ w2
        x1 = x + hs
        h2 = _gelu(_layernorm(x1, axis=-1) @ w3) @ w4
        return x1 + h2
    x = A_x
    h = x + _A_ref(_layernorm(x, axis=-1), A_mem0, A_Wq, A_Wk, A_Wv, A_Wo, A_seg_len)
    h2 = h + _B_ref(_layernorm(h, axis=-1), B_w1, B_w2, B_w3, B_w4)
    return h2
```

```python
import re

def v(i, n=1):
    return f"v{i}" if n == 1 else f"v[{i}:{i+n-1}]"
def a(i, n=1):
    return f"a{i}" if n == 1 else f"a[{i}:{i+n-1}]"
def s(i, n=1):
    return f"s{i}" if n == 1 else f"s[{i}:{i+n-1}]"

_REG = re.compile(r"^(-?)(abs\()?([vas])(\d+|\[(\d+):(\d+)\])\)?$")

def regs_of(op):
    op = op.strip()
    if op.startswith("|") and op.endswith("|"):
        op = op[1:-1]
    if op.startswith("-|") and op.endswith("|"):
        op = op[2:-1]
    if op in ("vcc", "vcc_lo", "vcc_hi"):
        return {("vcc", 0)}
    if op in ("exec", "exec_lo", "exec_hi"):
        return {("exec", 0)}
    if op == "m0":
        return {("m0", 0)}
    m = _REG.match(op)
    if not m:
        return set()
    k = m.group(3)
    if m.group(5) is not None:
        return {(k, i) for i in range(int(m.group(5)), int(m.group(6)) + 1)}
    return {(k, int(m.group(4)))}

TRANS = ("v_exp_f32", "v_log_f32", "v_rcp_f32", "v_rsq_f32", "v_sqrt_f32", "v_sin_f32", "v_cos_f32",
         "v_rcp_iflag_f32", "v_exp_f16", "v_rcp_f16")

def mfma_passes(mn):
    if "32x32x16" in mn or "32x32x8" in mn:
        return 8
    if "16x16x32" in mn or "16x16x16" in mn:
        return 4
    if "4x4x4" in mn:
        return 2
    raise ValueError(mn)

class Ins:
    __slots__ = ("text", "mn", "ops", "kind", "wr", "rd", "srcc", "dpp", "passes", "states", "wide_store_data", "mods")
    def __init__(self, text):
        self.text = text
        t = text.split(";")[0].strip()
        parts = t.split(None, 1)
        self.mn = parts[0]
        rest = parts[1] if len(parts) > 1 else ""
        ops, depth, cur = [], 0, ""
        for ch in rest:
            if ch in "[(":
                depth += 1
            if ch in "])":
                depth -= 1
            if ch == "," and depth == 0:
                ops.append(cur.strip()); cur = ""
            else:
                cur += ch
        if cur.strip():
            ops.append(cur.strip())
        mods = ""
        if ops:
            sp = ops[-1].split(None, 1)
            if len(sp) > 1 and not ops[-1].startswith("hwreg"):
                ops[-1] = sp[0]; mods = sp[1]
        self.mods = mods
        self.ops = ops
        mn = self.mn
        self.wr, self.rd, self.srcc = set(), set(), set()
        self.dpp = False
        self.passes = 0
        self.states = 1
        self.wide_store_data = set()
        R = lambda i: regs_of(ops[i]) if i < len(ops) else set()
        allr = lambda lo: set().union(*[regs_of(o) for o in ops[lo:]]) if len(ops) > lo else set()
        if mn == "s_nop":
            self.kind = "nop"; self.states = int(ops[0], 0) + 1
        elif mn.startswith("v_mfma"):
            self.kind = "mfma"; self.passes = mfma_passes(mn)
            self.wr = R(0); self.rd = R(1) | R(2) | R(3); self.srcc = R(3)
        elif mn.startswith("v_"):
            self.kind = "valu"
            self.dpp = any(k in mods for k in ("row_", "quad_perm", "wave_", "row_bcast", "row_mirror", "row_half_mirror"))
            if mn.startswith("v_cmp"):
                self.wr = R(0); self.rd = allr(1)
                if mn.startswith("v_cmpx"):
                    self.wr |= {("exec", 0)}
            elif mn.startswith(("v_add_co", "v_sub_co", "v_subrev_co", "v_addc_co", "v_subb_co", "v_mad_u64_u32", "v_div_scale")):
                self.wr = R(0) | R(1); self.rd = allr(2)
            elif mn.startswith("v_permlane") and "swap" in mn:
                self.wr = R(0) | R(1); self.rd = R(0) | R(1)
            elif mn.startswith(("v_fmac", "v_mac", "v_pk_fmac", "v_dot2c", "v_writelane")):
                self.wr = R(0); self.rd = allr(0)
            else:
                self.wr = R(0); self.rd = allr(1)
                if mn.startswith("v_cndmask") and len(ops) == 3:
                    self.rd |= {("vcc", 0)}
            if self.dpp:
                self.rd |= self.wr
        elif mn.startswith(("buffer_", "global_", "flat_", "scratch_")):
            self.kind = "vmem"
            lds = " lds" in (" " + mods) or mn.startswith("global_load_lds")
            if "atomic" in mn:
                self.rd = allr(0)
                if "sc0" in mods:
                    self.wr = R(0) if mn.startswith("global") else R(0)
            elif "load" in mn and not lds:
                self.wr = R(0); self.rd = allr(1)
            elif mn in ("buffer_inv", "buffer_wbl2"):
                pass
            else:
                self.rd = allr(0)
                if lds:
                    self.rd |= {("m0", 0)}
                if "store" in mn and ("x4" in mn or "x3" in mn):
                    d = R(0) if mn.startswith("buffer") else R(1)
                    self.wide_store_data = d
        elif mn.startswith("ds_"):
            self.kind = "ds"
            if mn.startswith(("ds_read", "ds_bpermute", "ds_permute", "ds_swizzle")) or "rtn" in mn:
                self.wr = R(0); self.rd = allr(1)
            else:
                self.rd = allr(0)
        elif mn.startswith("s_"):
            self.kind = "salu"
            if mn.startswith(("s_cmp", "s_cbranch", "s_branch", "s_waitcnt", "s_barrier", "s_endpgm", "s_setprio", "s_sleep",
                              "s_bitcmp", "s_setreg", "s_sendmsg")):
                self.rd = allr(0)
            else:
                self.wr = R(0); self.rd = allr(1)
                if "saveexec" in mn:
                    self.wr |= {("exec", 0)}
        else:
            raise ValueError("unknown instruction: " + text)

def required(prod, cons):
    n = 0
    pv = prod.kind == "valu"
    wr_v = {r for r in prod.wr if r[0] in "va" and len(r[0]) == 1}
    wr_s = {r for r in prod.wr if r[0] in ("s", "vcc")}
    if pv:
        if cons.kind == "mfma" and (wr_v & cons.rd):
            n = max(n, 2)
        if cons.kind == "mfma" and ("exec", 0) in prod.wr:
            n = max(n, 4)
        if cons.kind == "valu":
            if wr_s & cons.rd:
                if cons.mn.startswith(("v_readlane", "v_writelane")):
                    n = max(n, 4)
                n = max(n, 2)
            if cons.mn.startswith(("v_readlane", "v_readfirstlane")) and (wr_v & cons.rd):
                n = max(n, 1)
            if cons.dpp and (wr_v & cons.rd):
                n = max(n, 2)
            if cons.dpp and ("exec", 0) in prod.wr:
                n = max(n, 5)
            if cons.mn.startswith("v_permlane") and (wr_v & cons.rd):
                n = max(n, 2)
            if cons.mn.startswith("v_permlane") and ("exec", 0) in prod.wr:
                n = max(n, 4)
            if prod.mn.startswith(TRANS) and (wr_v & cons.rd) :
                n = max(n, 1)
            if ("exec", 0) in prod.wr and cons.mn.startswith(("v_readlane", "v_readfirstlane", "v_writelane")):
                n = max(n, 4)
        if cons.kind == "vmem" and (wr_s & cons.rd):
            n = max(n, 5)
        if cons.kind == "salu" and (wr_s & cons.rd):
            n = max(n, 1)
        if cons.kind == "salu" and cons.mn.startswith("s_cbranch_vcc") and ("vcc", 0) in prod.wr:
            n = max(n, 1)
    if prod.kind == "mfma":
        P = prod.passes
        idx = {2: 0, 4: 1, 8: 2, 16: 3}[P]
        D = prod.wr
        if cons.kind == "mfma":
            ab = regs_of(cons.ops[1]) | regs_of(cons.ops[2])
            if D & ab:
                n = max(n, [5, 8, 12, 20][idx])
            if D & cons.srcc:
                if cons.srcc == D and cons.passes == P:
                    n = max(n, [2, 0, 0, 0][idx])
                else:
                    n = max(n, [4, 6, 10, 18][idx])
            elif D & cons.wr:
                n = max(n, [4, 6, 10, 18][idx])
        elif cons.kind in ("valu", "vmem", "ds"):
            if D & (cons.rd | cons.wr):
                n = max(n, [5, 8, 12, 20][idx])
        if cons.kind in ("valu", "vmem", "ds") and (prod.srcc & cons.wr):
            n = max(n, [1, 3, 7, 15][idx])
    if prod.kind == "vmem" and prod.wide_store_data:
        if cons.kind in ("valu", "mfma") and (prod.wide_store_data & cons.wr):
            n = max(n, 2)
        elif cons.kind in ("vmem", "ds") and (prod.wide_store_data & cons.wr):
            n = max(n, 1)
    if prod.kind == "salu" and ("m0", 0) in prod.wr and cons.kind == "vmem" and ("m0", 0) in cons.rd:
        n = max(n, 1)
    return n

WINDOW = 22

class Prog:
    def __init__(self):
        self.items = []
        self.uid = 0
    def __call__(self, text):
        for line in text.split("\n"):
            line = line.strip()
            if not line:
                continue
            if line.startswith(";"):
                self.items.append(("t", line))
            elif line.endswith(":"):
                self.items.append(("l", line[:-1]))
            elif line.startswith("."):
                self.items.append(("t", line))
            else:
                self.items.append(("i", Ins(line)))
    def label(self, name):
        self.items.append(("l", name))
    def text(self, t):
        self.items.append(("t", t))
    def fresh(self, p="L"):
        self.uid += 1
        return f"{p}_{self.uid}"
    def nops(self, n):
        while n > 0:
            k = min(n, 16)
            self(f"s_nop {k-1}")
            n -= k

    def fix_hazards(self):
        out = []
        hist = []
        inserted = 0
        for kind, it in self.items:
            if kind == "t" and it.startswith((".section", ".text", ".globl", ".p2align")):
                hist = []
            if kind != "i":
                out.append((kind, it)); continue
            need = 0
            dist = 0
            for p in reversed(hist):
                r = required(p, it)
                if r > dist:
                    need = max(need, r - dist)
                dist += p.states
                if dist >= WINDOW:
                    break
            while need > 0:
                k = min(need, 16)
                nop = Ins(f"s_nop {k-1}")
                out.append(("i", nop)); hist.append(nop); need -= k; inserted += 1
            out.append(("i", it)); hist.append(it)
            if it.mn in ("s_endpgm", "s_branch", "s_setpc_b64"):
                hist = []
            hist = hist[-WINDOW:]
        self.items = out
        labels = {}
        for idx, (kind, it) in enumerate(self.items):
            if kind == "l":
                labels[it] = idx
        problems = []
        for idx, (kind, it) in enumerate(self.items):
            if kind == "i" and it.mn.startswith(("s_cbranch", "s_branch")):
                tgt = it.ops[0]
                if tgt not in labels:
                    problems.append(f"unknown label {tgt}"); continue
                pre = []
                j = idx
                tot = 0
                while j >= 0 and tot < WINDOW:
                    k2, i2 = self.items[j]
                    if k2 == "i":
                        if j != idx and i2.mn in ("s_endpgm", "s_branch"):
                            break
                        pre.insert(0, i2); tot += i2.states
                    j -= 1
                j = labels[tgt]
                post = []
                tot = 0
                while j < len(self.items) and tot < WINDOW:
                    k2, i2 = self.items[j]
                    if k2 == "i":
                        post.append(i2); tot += i2.states
                        if i2.mn in ("s_endpgm", "s_branch"):
                            break
                    j += 1
                for ci, c in enumerate(post):
                    dist = sum(x.states for x in post[:ci])
                    for p in reversed(pre):
                        r = required(p, c)
                        if r > dist:
                            problems.append(f"hazard across branch to {tgt}: [{p.text}] -> [{c.text}] needs {r}, has {dist}")
                        dist += p.states
                        if dist >= WINDOW:
                            break
        return inserted, problems

    def render(self):
        L = []
        for kind, it in self.items:
            if kind == "i":
                L.append("    " + it.text)
            elif kind == "l":
                L.append(it + ":")
            else:
                L.append(it)
        return "\n".join(L) + "\n"

    def count(self):
        return sum(1 for k, _ in self.items if k == "i")
```

```python
from asmlib import *
import layout as L
from chain import srd, f32bits, SCALE_LOG2E

def attn_body(P, sWS, sSEG, sH, sT0, sT1, sCs, vbase=8):
    vL, vLI, vG, T = 0, 1, 2, 3
    vQ = vbase; vK = vQ + 32; vV = vK + 32; vKM = vV + 32; vVM = vKM + 16
    vS = vVM + 16; vP = vS + 12; vSUM = vP + 6; vO = vSUM + 4 + 2; vON = vO + 32; vCD = vON + 4; vCM = vCD + 4; vX = vCM + 4
    S = f"s[{sWS}:{sWS+3}]"
    P(f"v_and_b32 v{vLI}, 15, v{vL}")
    P(f"v_lshrrev_b32 v{vG}, 4, v{vL}")
    P(f"v_lshlrev_b32 v{T}, 4, v{vL}")
    P(f"s_lshl_b32 s{sT0}, s{sSEG}, 18")
    P(f"s_lshl_b32 s{sT1}, s{sH}, 13")
    P(f"s_add_u32 s{sT0}, s{sT0}, s{sT1}")
    for (reg, base) in ((vQ, L.QF), (vK, L.KF), (vV, L.VF)):
        P(f"s_add_u32 s{sT1}, s{sT0}, {base}")
        for n in range(8):
            if n == 4:
                P(f"s_add_u32 s{sT1}, s{sT1}, 4096")
            P(f"buffer_load_dwordx4 v[{reg+n*4}:{reg+n*4+3}], v{T}, {S}, s{sT1} offen offset:{(n&3)*1024}")
    P(f"s_lshl_b32 s{sT0}, s{sSEG}, 16")
    P(f"s_lshl_b32 s{sT1}, s{sH}, 11")
    P(f"s_add_u32 s{sT0}, s{sT0}, s{sT1}")
    P(f"v_and_b32 v{T+1}, 7, v{vLI}")
    P(f"v_lshlrev_b32 v{T+1}, 8, v{T+1}")
    P(f"v_lshl_add_u32 v{T+1}, v{vG}, 4, v{T+1}")
    P(f"s_add_u32 s{sT1}, s{sT0}, {L.KM}")
    for ks in range(4):
        P(f"buffer_load_dwordx4 v[{vKM+ks*4}:{vKM+ks*4+3}], v{T+1}, {S}, s{sT1} offen offset:{ks*64}")
    P(f"v_and_b32 v{T+2}, 1, v{vG}")
    P(f"v_lshlrev_b32 v{T+2}, 3, v{T+2}")
    P(f"v_lshl_add_u32 v{T+2}, v{vLI}, 4, v{T+2}")
    P(f"s_add_u32 s{sT1}, s{sT0}, {L.VMT}")
    for te in range(8):
        P(f"buffer_load_dwordx2 v[{vVM+te*2}:{vVM+te*2+1}], v{T+2}, {S}, s{sT1} offen offset:{te*256}")
    P(f"v_mov_b32 v{T+3}, 0xff800000")
    P(f"v_mov_b32 v{T+4}, 0")
    for r in range(4):
        P(f"v_mov_b32 v{vON+r}, 0x3f803f80")
        P(f"v_lshl_add_u32 v{T+1}, v{vG}, 2, {r}")
        P(f"v_cmp_gt_u32 vcc, v{T+1}, v{vLI}")
        P(f"v_cndmask_b32 v{vCD+r}, v{T+4}, v{T+3}, vcc")
    P(f"v_cmp_lt_u32 vcc, 1, v{vG}")
    for r in range(4):
        P(f"v_cndmask_b32 v{vCM+r}, v{T+4}, v{T+3}, vcc")
    P(f"v_lshlrev_b32 v{T+1}, 13, v{vLI}")
    P(f"v_and_b32 v{T+2}, 1, v{vG}")
    P(f"v_lshl_add_u32 v{T+1}, v{T+2}, 5, v{T+1}")
    P(f"v_lshrrev_b32 v{T+2}, 1, v{vG}")
    P(f"v_lshl_add_u32 v{T+1}, v{T+2}, 4, v{T+1}")
    P(f"s_lshl_b32 s{sT0}, s{sSEG}, 18")
    P(f"s_lshl_b32 s{sT1}, s{sH}, 8")
    P(f"s_add_u32 s{sT0}, s{sT0}, s{sT1}")
    P(f"s_add_u32 s{sT0}, s{sT0}, {L.OB}")
    P("s_waitcnt vmcnt(0)")
    for it in range(2):
        ntile = 2 + it
        for ks in range(4):
            q = vQ + (it * 4 + ks) * 4
            for tl in range(ntile):
                d = vS + tl * 4
                aop = (vKM + ks * 4) if tl == 0 else (vK + ((tl - 1) * 4 + ks) * 4)
                if ks == 0:
                    if tl == 0: c = f"v[{vCM}:{vCM+3}]"
                    elif tl - 1 == it: c = f"v[{vCD}:{vCD+3}]"
                    else: c = "0"
                else:
                    c = f"v[{d}:{d+3}]"
                P(f"v_mfma_f32_16x16x32_bf16 v[{d}:{d+3}], v[{aop}:{aop+3}], v[{q}:{q+3}], {c}")
        n = ntile * 4
        mx = vX
        P(f"v_max3_f32 v{mx}, v{vS}, v{vS+1}, v{vS+2}")
        k = 3
        while k < n:
            if k + 1 < n:
                P(f"v_max3_f32 v{mx}, v{mx}, v{vS+k}, v{vS+k+1}"); k += 2
            else:
                P(f"v_max_f32 v{mx}, v{mx}, v{vS+k}"); k += 1
        P(f"v_mov_b32 v{mx+1}, v{mx}")
        P(f"v_permlane32_swap_b32 v{mx}, v{mx+1}")
        P(f"v_max_f32 v{mx}, v{mx}, v{mx+1}")
        P(f"v_mov_b32 v{mx+1}, v{mx}")
        P(f"v_permlane16_swap_b32 v{mx}, v{mx+1}")
        P(f"v_max_f32 v{mx}, v{mx}, v{mx+1}")
        P(f"v_mul_f32 v{mx}, s{sCs}, v{mx}")
        for k in range(n):
            P(f"v_fma_f32 v{vS+k}, v{vS+k}, s{sCs}, -v{mx}")
        for k in range(n):
            P(f"v_exp_f32 v{vS+k}, v{vS+k}")
        for k in range(n // 2):
            P(f"v_cvt_pk_bf16_f32 v{vP+k}, v{vS+2*k}, v{vS+2*k+1}")
        if it == 0:
            P(f"v_mov_b32 v{vP+4}, 0")
            P(f"v_mov_b32 v{vP+5}, 0")
        P(f"v_mfma_f32_16x16x16_bf16 v[{vSUM}:{vSUM+3}], v[{vON}:{vON+1}], v[{vP}:{vP+1}], 0")
        for te in range(8):
            d = vO + te * 4
            P(f"v_mfma_f32_16x16x16_bf16 v[{d}:{d+3}], v[{vVM+te*2}:{vVM+te*2+1}], v[{vP}:{vP+1}], 0")
        P(f"v_mfma_f32_16x16x32_bf16 v[{vSUM}:{vSUM+3}], v[{vON}:{vON+3}], v[{vP+2}:{vP+5}], v[{vSUM}:{vSUM+3}]")
        for te in range(8):
            d = vO + te * 4
            P(f"v_mfma_f32_16x16x32_bf16 v[{d}:{d+3}], v[{vV+te*4}:{vV+te*4+3}], v[{vP+2}:{vP+5}], v[{d}:{d+3}]")
        P(f"v_rcp_f32 v{mx}, v{vSUM}")
        for tp in range(4):
            t0 = vO + 2 * tp * 4; t1 = t0 + 4
            for r in range(4):
                P(f"v_mul_f32 v{t0+r}, v{t0+r}, v{mx}")
                P(f"v_mul_f32 v{t1+r}, v{t1+r}, v{mx}")
            w = vS + (tp & 1) * 4
            P(f"v_cvt_pk_bf16_f32 v{w}, v{t0}, v{t0+1}")
            P(f"v_cvt_pk_bf16_f32 v{w+1}, v{t0+2}, v{t0+3}")
            P(f"v_cvt_pk_bf16_f32 v{w+2}, v{t1}, v{t1+1}")
            P(f"v_cvt_pk_bf16_f32 v{w+3}, v{t1+2}, v{t1+3}")
            P(f"v_permlane16_swap_b32 v{w}, v{w+2}")
            P(f"v_permlane16_swap_b32 v{w+1}, v{w+3}")
            P(f"s_add_u32 s{sT1}, s{sT0}, {it*16*8192}")
            P(f"buffer_store_dwordx4 v[{w}:{w+3}], v{T+1}, {S}, s{sT1} offen offset:{tp*64}")
    return vX + 2

def gen_attn(P, name="attn_kernel"):
    NWG = 512
    P.text(f".globl {name}")
    P.text(".p2align 8")
    P.text(f".type {name},@function")
    P.label(name)
    P(f"s_cmp_ge_u32 s2, {NWG}")
    P(f"s_cbranch_scc1 {name}_end")
    P("s_load_dwordx2 s[22:23], s[0:1], 112")
    P("v_lshrrev_b32 v1, 6, v0")
    P("v_readfirstlane_b32 s8, v1")
    P("v_and_b32 v0, 63, v0")
    P("s_lshl_b32 s9, s2, 2")
    P("s_add_u32 s9, s9, s8")
    P("s_lshr_b32 s10, s9, 5")
    P("s_and_b32 s11, s9, 31")
    P(f"s_mov_b32 s14, {hex(f32bits(SCALE_LOG2E))}")
    P("s_waitcnt lgkmcnt(0)")
    srd(P, 4, 22, L.WS_SIZE)
    nv = attn_body(P, 4, 10, 11, 12, 13, 14)
    P.label(f"{name}_end")
    P("s_endpgm")
    nv = (nv + 7) // 8 * 8
    return dict(name=name, vgpr=nv, accum=nv, sgpr=32, lds=0, grid=NWG)
```

```python
from asmlib import *
import layout as L

OOB = 0x40000000
SCALE_LOG2E = 0.08838834764831845 * 1.4426950408889634
TMO = 0x40000

def f32bits(x):
    import struct
    return struct.unpack("<I", struct.pack("<f", x))[0]

def srd(P, d, base_lo, nbytes):
    P(f"s_mov_b32 s{d}, s{base_lo}")
    P(f"s_and_b32 s{d+1}, s{base_lo+1}, 0xffff")
    P(f"s_mov_b32 s{d+2}, {hex(nbytes)}")
    P(f"s_mov_b32 s{d+3}, 0x00020000")

def role_assign(P, name, NWG, sWS, sX, sC, sW, sMODE, sIT, sT0, sT1, vT, vL, END):
    Lrole = P.fresh("role")
    P(f"s_cmp_lg_u32 s{sW}, 0")
    P(f"s_cbranch_scc1 {Lrole}")
    P(f"s_lshl_b32 s{sT0}, s{sX}, 8")
    P(f"v_mov_b32 v{vT}, s{sT0}")
    P(f"v_mov_b32 v{vT+1}, 1")
    P(f"s_mov_b64 exec, 1")
    P(f"buffer_atomic_add v{vT+1}, v{vT}, s[{sWS}:{sWS+3}], 0 offen sc0")
    P("s_waitcnt vmcnt(0)")
    P(f"s_mov_b64 exec, -1")
    P(f"v_readfirstlane_b32 s{sC}, v{vT+1}")
    Lp = P.fresh("rp")
    P(f"v_lshlrev_b32 v{vT}, 8, v{vL}")
    P(f"v_min_u32 v{vT}, 0x700, v{vT}")
    P.label(Lp)
    P(f"s_add_u32 s{sIT}, s{sIT}, 1")
    P(f"s_cmp_gt_u32 s{sIT}, {TMO}")
    P(f"s_cbranch_scc1 {END}")
    P(f"buffer_load_dword v{vT+2}, v{vT}, s[{sWS}:{sWS+3}], 0 offen sc1")
    P("s_waitcnt vmcnt(0)")
    P(f"s_mov_b32 s{sT0}, 0")
    P(f"s_mov_b32 s{sMODE}, 0")
    for x in range(8):
        P(f"v_readlane_b32 s{sT1}, v{vT+2}, {x}")
        P(f"s_nop 0")
        P(f"s_add_u32 s{sT0}, s{sT0}, s{sT1}")
        P(f"s_cmp_lg_u32 s{sT1}, {NWG//8}")
        P(f"s_cselect_b32 s{sMODE}, 1, s{sMODE}")
    P(f"s_cmp_lg_u32 s{sT0}, {NWG}")
    P(f"s_cbranch_scc1 {Lp}")
    Lfast = P.fresh("fast")
    P(f"s_cmp_eq_u32 s{sMODE}, 0")
    P(f"s_cbranch_scc1 {Lfast}")
    P(f"v_mov_b32 v{vT}, 0x800")
    P(f"v_mov_b32 v{vT+1}, 1")
    P(f"s_mov_b64 exec, 1")
    P(f"buffer_atomic_add v{vT+1}, v{vT}, s[{sWS}:{sWS+3}], 0 offen sc0")
    P("s_waitcnt vmcnt(0)")
    P(f"s_mov_b64 exec, -1")
    P(f"v_readfirstlane_b32 s{sT0}, v{vT+1}")
    P(f"s_lshr_b32 s{sX}, s{sT0}, {(NWG//8).bit_length()-1}")
    P(f"s_and_b32 s{sC}, s{sT0}, {NWG//8-1}")
    P.label(Lfast)
    P(f"v_mov_b32 v{vT}, 0")
    P(f"v_mov_b32 v{vT+1}, s{sX}")
    P(f"v_mov_b32 v{vT+2}, s{sC}")
    P(f"v_mov_b32 v{vT+3}, s{sMODE}")
    P(f"ds_write_b32 v{vT}, v{vT+1}")
    P(f"ds_write_b32 v{vT}, v{vT+2} offset:4")
    P(f"ds_write_b32 v{vT}, v{vT+3} offset:8")
    P("s_waitcnt lgkmcnt(0)")
    P.label(Lrole)
    P("s_barrier")
    P(f"v_mov_b32 v{vT}, 0")
    P(f"ds_read_b32 v{vT+1}, v{vT}")
    P(f"ds_read_b32 v{vT+2}, v{vT} offset:4")
    P(f"ds_read_b32 v{vT+3}, v{vT} offset:8")
    P("s_waitcnt lgkmcnt(0)")
    P(f"v_readfirstlane_b32 s{sX}, v{vT+1}")
    P(f"v_readfirstlane_b32 s{sC}, v{vT+2}")
    P(f"v_readfirstlane_b32 s{sMODE}, v{vT+3}")
    P("s_barrier")

def gen_chain(P, name="chain_kernel", NWG=256, stamps=False, nsteps=64, partbf16=False, dly=(0,0,0,0), early_b=True):
    G = 16
    sWS, sWT = 4, 8
    sMEM0, sWQ, sWK, sWV, sWO, sWSP = 12, 14, 16, 18, 20, 22
    sX, sC, sW, sMODE, sSTEP, sIT = 24, 25, 26, 27, 28, 29
    sHL, sSL, sH = 30, 31, 32
    soMEMR, soMEMW, soQK, soOX, soPARTW, soPARTR, soKF, soVF, soKM, soVM = range(34, 44)
    soPM, soPQ, soPO, soPP = 44, 45, 46, 47
    sT0, sT1, sT2, sT3 = 48, 49, 50, 51
    sCs = 52
    sKVR, sKVW = 53, 54
    soDBG = 56
    sMI, sMG = 58, 60
    vL, vLI, vGq = 0, 1, 2
    vT = 3
    (vo_lin, vo_lw, vo_lmf, vo_pubqk, vo_km, vo_vm, vo_qk, vo_pubo, vo_lo, vo_lwo, vo_part, vo_memw,
     vo_kv, vo_lkv) = range(10, 24)
    vo_d = 24
    vSENT = 28
    vMF = 32
    vKT = 96
    vVT = 128
    vR = 132
    vAE, vAO, vVE, vVO = 148, 152, 156, 160
    vS = 164
    vP = 176
    vSUM, vO = 182, 186
    vWO = 192
    vONES = 10**9
    vX = 190
    vD = vMF
    vG = vMF
    aWA, aWV = 0, 128
    LDS_M, LDS_O, LDS_KV = 0, 16384, 24576
    KVSZ = 10240
    PB = 256 if partbf16 else 512

    P.text(f".globl {name}")
    P.text(".p2align 8")
    P.text(f".type {name},@function")
    P.label(name)
    END = f"{name}_end"
    P(f"s_cmp_ge_u32 s2, {NWG}")
    P(f"s_cbranch_scc1 {END}")
    P(f"s_load_dwordx4 s[12:15], s[0:1], 8")
    P(f"s_load_dwordx4 s[16:19], s[0:1], 24")
    P(f"s_load_dwordx2 s[20:21], s[0:1], 40")
    P(f"s_load_dwordx2 s[22:23], s[0:1], 112")
    P(f"s_getreg_b32 s{sX}, hwreg(HW_REG_XCC_ID)")
    P(f"s_and_b32 s{sX}, s{sX}, 7")
    P(f"v_lshrrev_b32 v{vT}, 6, v0")
    P(f"v_and_b32 v{vL}, 63, v0")
    P(f"v_readfirstlane_b32 s{sW}, v{vT}")
    P(f"v_and_b32 v{vLI}, 15, v{vL}")
    P(f"v_lshrrev_b32 v{vGq}, 4, v{vL}")
    P(f"s_mov_b32 s{sIT}, 0")
    P("s_waitcnt lgkmcnt(0)")
    srd(P, sWS, sWSP, L.WS_SIZE)
    role_assign(P, name, NWG, sWS, sX, sC, sW, sMODE, sIT, sT0, sT1, vT, vL, END)
    P(f"s_cmp_ge_u32 s{sC}, {G}")
    P(f"s_cbranch_scc1 {END}")
    P(f"s_lshr_b32 s{sHL}, s{sC}, 2")
    P(f"s_and_b32 s{sSL}, s{sC}, 3")
    P(f"s_lshl_b32 s{sH}, s{sX}, 2")
    P(f"s_add_u32 s{sH}, s{sH}, s{sHL}")
    P(f"v_lshrrev_b32 v{vT}, 2, v{vL}")
    P(f"s_lshl_b32 s{sT0}, s{sW}, 8")
    P(f"v_add_u32 v{vT}, s{sT0}, v{vT}")
    P(f"v_lshlrev_b32 v{vT}, 13, v{vT}")
    P(f"v_and_b32 v{vT+1}, 3, v{vL}")
    P(f"v_lshl_add_u32 v{vT}, v{vT+1}, 4, v{vT}")
    P(f"s_lshl_b32 s{sT0}, s{sH}, 8")
    P(f"s_lshl_b32 s{sT1}, s{sSL}, 6")
    P(f"s_add_u32 s{sT0}, s{sT0}, s{sT1}")
    P(f"v_add_u32 v{vT}, s{sT0}, v{vT}")
    P(f"v_lshrrev_b32 v{vT+2}, 3, v{vL}")
    P(f"s_lshl_b32 s{sT0}, s{sX}, 9")
    P(f"s_lshl_b32 s{sT1}, s{sW}, 7")
    P(f"s_add_u32 s{sT0}, s{sT0}, s{sT1}")
    P(f"v_add_u32 v{vT+2}, s{sT0}, v{vT+2}")
    P(f"v_lshlrev_b32 v{vT+2}, 11, v{vT+2}")
    P(f"v_and_b32 v{vT+1}, 7, v{vL}")
    P(f"v_lshl_add_u32 v{vT+2}, v{vT+1}, 4, v{vT+2}")
    P(f"s_lshl_b32 s{sT0}, s{sC}, 7")
    P(f"v_add_u32 v{vT+2}, s{sT0}, v{vT+2}")
    P(f"s_lshl_b32 s{sT3}, s{sW}, 14")
    def stage(ptr, nbytes, voff, ldsbase, rowstep):
        srd(P, sWT, ptr, nbytes)
        for n in range(16):
            P(f"s_add_u32 s{sT0}, s{sT3}, {ldsbase + n*1024}")
            P(f"s_mov_b32 m0, s{sT0}")
            P(f"s_mov_b32 s{sT1}, {n*rowstep}")
            P(f"buffer_load_dwordx4 v{voff}, s[{sWT}:{sWT+3}], s{sT1} offen lds")
    stage(sWQ, 1024*4096*2, vT, 0, 16*8192)
    stage(sWK, 1024*4096*2, vT, 65536, 16*8192)
    P(f"v_lshrrev_b32 v{vT+3}, 2, v{vLI}")
    P(f"v_and_b32 v{vT+4}, 3, v{vLI}")
    P(f"v_lshlrev_b32 v{vT+4}, 3, v{vT+4}")
    P(f"v_lshl_add_u32 v{vT+5}, v{vGq}, 3, v{vT+3}")
    P(f"v_lshl_add_u32 v{vT+6}, v{vT+5}, 7, v{vT+4}")
    P(f"v_lshl_add_u32 v{vT+5}, v{vT+5}, 6, v{vT+4}")
    P(f"s_and_b32 s{sT0}, s{sW}, 1")
    P(f"s_lshl_b32 s{sT0}, s{sT0}, 5")
    P(f"v_add_u32 v{vT+5}, s{sT0}, v{vT+5}")
    P(f"s_lshr_b32 s{sT1}, s{sW}, 1")
    P(f"s_lshl_b32 s{sT1}, s{sT1}, 16")
    P(f"v_add_u32 v{vT+1}, s{sT1}, v{vT+5}")
    P(f"s_lshl_b32 s{sT0}, s{sW}, 5")
    P(f"s_add_u32 s{sT0}, s{sT0}, 65536")
    P(f"v_add_u32 v{vT+6}, s{sT0}, v{vT+6}")
    P("s_waitcnt vmcnt(0)")
    P("s_barrier")
    for ks in range(32):
        r = aWA + ks * 4
        P(f"ds_read_b64_tr_b16 a[{r}:{r+1}], v{vT+1} offset:{ks*2048}")
        P(f"ds_read_b64_tr_b16 a[{r+2}:{r+3}], v{vT+1} offset:{ks*2048 + 256}")
        if ks % 4 == 3:
            P("s_waitcnt lgkmcnt(0)")
    P("s_barrier")
    stage(sWV, 1024*4096*2, vT, 0, 16*8192)
    stage(sWO, 4096*1024*2, vT+2, 65536, 8*2048)
    P("s_waitcnt vmcnt(0)")
    P("s_barrier")
    for ks in range(32):
        r = aWV + ks * 4
        P(f"ds_read_b64_tr_b16 a[{r}:{r+1}], v{vT+5} offset:{ks*2048}")
        P(f"ds_read_b64_tr_b16 a[{r+2}:{r+3}], v{vT+5} offset:{ks*2048 + 256}")
        if ks % 4 == 3:
            P("s_waitcnt lgkmcnt(0)")
    for kk in range(16):
        r = vWO + kk * 4
        P(f"ds_read_b64_tr_b16 v[{r}:{r+1}], v{vT+6} offset:{kk*4096}")
        P(f"ds_read_b64_tr_b16 v[{r+2}:{r+3}], v{vT+6} offset:{kk*4096 + 512}")
        if kk % 4 == 3:
            P("s_waitcnt lgkmcnt(0)")
    P("s_barrier")

    i8 = vX
    vOOB = vT + 6
    P(f"v_and_b32 v{i8}, 7, v{vLI}")
    P(f"v_mov_b32 v{vOOB}, {hex(OOB)}")
    P(f"v_cmp_gt_u32 s[{sMI}:{sMI+1}], 8, v{vLI}")
    P(f"v_cmp_gt_u32 s[{sMG}:{sMG+1}], 2, v{vGq}")
    P(f"v_lshlrev_b32 v{vo_lin}, 4, v{vL}")
    P(f"s_lshl_b32 s{sT0}, s{sW}, 12")
    P(f"v_add_u32 v{vo_lw}, s{sT0}, v{vo_lin}")
    P(f"s_lshl_b32 s{sT0}, s{sW}, 11")
    P(f"v_add_u32 v{vo_lo}, s{sT0}, v{vo_lin}")
    P(f"v_lshrrev_b32 v{vT}, 3, v{vLI}")
    P(f"v_lshlrev_b32 v{vT}, 9, v{vT}")
    P(f"v_lshl_add_u32 v{vT}, v{vGq}, 7, v{vT}")
    P(f"v_lshl_add_u32 v{vo_lmf}, v{i8}, 4, v{vT}")
    P(f"s_lshr_b32 s{sT1}, s{sW}, 1")
    P(f"s_and_b32 s{sT2}, s{sW}, 1")
    P(f"s_lshl_b32 s{sT0}, s{sHL}, 12")
    P(f"s_lshl_b32 s{sT3}, s{sSL}, 10")
    P(f"s_add_u32 s{sT0}, s{sT0}, s{sT3}")
    P(f"s_lshl_b32 s{sT3}, s{sW}, 8")
    P(f"s_add_u32 s{sT0}, s{sT0}, s{sT3}")
    P(f"v_lshlrev_b32 v{vT}, 5, v{vLI}")
    P(f"v_lshl_add_u32 v{vT}, v{vGq}, 3, v{vT}")
    P(f"v_add_u32 v{vo_pubqk}, s{sT0}, v{vT}")
    P(f"v_cndmask_b32 v{vo_pubqk}, v{vOOB}, v{vo_pubqk}, s[{sMI}:{sMI+1}]")
    P(f"s_lshl_b32 s{sT0}, s{sH}, 11")
    P(f"s_lshl_b32 s{sT3}, s{sSL}, 6")
    P(f"s_add_u32 s{sT0}, s{sT0}, s{sT3}")
    P(f"s_lshl_b32 s{sT3}, s{sT2}, 5")
    P(f"s_add_u32 s{sT0}, s{sT0}, s{sT3}")
    P(f"v_lshlrev_b32 v{vT}, 8, v{vLI}")
    P(f"v_lshl_add_u32 v{vT}, v{vGq}, 3, v{vT}")
    P(f"v_add_u32 v{vo_km}, s{sT0}, v{vT}")
    P(f"v_cndmask_b32 v{vo_km}, v{vOOB}, v{vo_km}, s[{sMI}:{sMI+1}]")
    P(f"s_lshl_b32 s{sT0}, s{sH}, 7")
    P(f"s_lshl_b32 s{sT3}, s{sSL}, 5")
    P(f"s_add_u32 s{sT0}, s{sT0}, s{sT3}")
    P(f"s_lshl_b32 s{sT3}, s{sT2}, 4")
    P(f"s_add_u32 s{sT0}, s{sT0}, s{sT3}")
    P(f"v_add_u32 v{vT}, s{sT0}, v{vLI}")
    P(f"v_lshlrev_b32 v{vT}, 4, v{vT}")
    P(f"v_and_b32 v{vT+1}, 1, v{vGq}")
    P(f"v_lshl_add_u32 v{vo_vm}, v{vT+1}, 3, v{vT}")
    P(f"v_cndmask_b32 v{vo_vm}, v{vo_vm}, v{vOOB}, s[{sMG}:{sMG+1}]")
    P(f"s_lshl_b32 s{sT0}, s{sHL}, 12")
    P(f"v_lshrrev_b32 v{vT}, 3, v{vLI}")
    P(f"v_lshlrev_b32 v{vT}, 9, v{vT}")
    P(f"v_lshrrev_b32 v{vT+1}, 1, v{vGq}")
    P(f"v_lshl_add_u32 v{vT}, v{vT+1}, 8, v{vT}")
    P(f"v_lshl_add_u32 v{vT}, v{i8}, 5, v{vT}")
    P(f"v_and_b32 v{vT+1}, 1, v{vGq}")
    P(f"v_lshl_add_u32 v{vT}, v{vT+1}, 4, v{vT}")
    P(f"v_add_u32 v{vo_qk}, s{sT0}, v{vT}")
    P(f"s_lshl_b32 s{sT0}, s{sC}, 9")
    P(f"s_lshl_b32 s{sT3}, s{sT2}, 8")
    P(f"s_add_u32 s{sT0}, s{sT0}, s{sT3}")
    P(f"v_lshrrev_b32 v{vT}, 1, v{vGq}")
    P(f"v_lshlrev_b32 v{vT}, 7, v{vT}")
    P(f"v_lshl_add_u32 v{vT}, v{vLI}, 4, v{vT}")
    P(f"v_and_b32 v{vT+1}, 1, v{vGq}")
    P(f"v_lshl_add_u32 v{vT}, v{vT+1}, 3, v{vT}")
    P(f"v_add_u32 v{vo_pubo}, s{sT0}, v{vT}")
    P(f"v_cndmask_b32 v{vo_pubo}, v{vOOB}, v{vo_pubo}, s[{sMI}:{sMI+1}]")
    P(f"s_lshl_b32 s{sT0}, s{sH}, 13")
    P(f"v_add_u32 v{vo_kv}, s{sT0}, v{vo_lin}")
    P(f"s_lshl_b32 s{sT0}, s{sC}, 2")
    P(f"s_add_u32 s{sT0}, s{sT0}, s{sW}")
    P(f"s_mul_i32 s{sT0}, s{sT0}, {PB}")
    P(f"v_mul_u32_u24 v{vT}, {PB//8}, v{vLI}")
    P(f"v_mul_u32_u24 v{vT+1}, {PB//32}, v{vGq}")
    P(f"v_add3_u32 v{vo_part}, v{vT}, v{vT+1}, s{sT0}")
    P(f"v_cndmask_b32 v{vo_part}, v{vOOB}, v{vo_part}, s[{sMI}:{sMI+1}]")
    P(f"v_lshrrev_b32 v{vT}, 5, v{vL}")
    P(f"v_lshlrev_b32 v{vT}, 15, v{vT}")
    P(f"v_bfe_u32 v{vT+1}, v{vL}, 2, 3")
    P(f"v_mul_u32_u24 v{vT+3}, {PB//8}, v{vT+1}")
    P(f"v_and_b32 v{vT+2}, 3, v{vL}")
    P(f"v_mul_u32_u24 v{vT+4}, {PB//32}, v{vT+2}")
    P(f"v_add3_u32 v{vT}, v{vT}, v{vT+3}, v{vT+4}")
    P(f"v_add_u32 v{vT}, s{sT0}, v{vT}")
    for m in range(4):
        P(f"v_add_u32 v{vo_d+m}, {m*65536}, v{vT}")
    P(f"s_lshl_b32 s{sT0}, s{sC}, 10")
    P(f"s_lshr_b32 s{sT1}, s{sW}, 1")
    P(f"s_lshl_b32 s{sT1}, s{sT1}, 9")
    P(f"s_add_u32 s{sT0}, s{sT0}, s{sT1}")
    P(f"s_lshl_b32 s{sT1}, s{sT2}, 8")
    P(f"s_add_u32 s{sT0}, s{sT0}, s{sT1}")
    P(f"v_lshrrev_b32 v{vT}, 1, v{vT+2}")
    P(f"v_lshlrev_b32 v{vT}, 7, v{vT}")
    P(f"v_lshl_add_u32 v{vT}, v{vT+1}, 4, v{vT}")
    P(f"v_and_b32 v{vT+3}, 1, v{vT+2}")
    P(f"v_lshl_add_u32 v{vT}, v{vT+3}, 3, v{vT}")
    P(f"v_add_u32 v{vo_memw}, s{sT0}, v{vT}")
    P(f"v_cmp_gt_u32 vcc, 32, v{vL}")
    P(f"v_cndmask_b32 v{vo_memw}, v{vOOB}, v{vo_memw}, vcc")
    P(f"s_lshl_b32 s{sT0}, s{sC}, 7")
    P(f"s_lshl_b32 s{sT1}, s{sW}, 5")
    P(f"s_add_u32 s{sT0}, s{sT0}, s{sT1}")
    P(f"v_lshlrev_b32 v{vT}, 11, v{vT+1}")
    P(f"v_lshl_add_u32 v{vT}, v{vT+2}, 3, v{vT}")
    P(f"v_add_u32 v{vT}, s{sT0}, v{vT}")
    srd(P, sWT, sMEM0, 8 * 1024 * 2)
    P(f"buffer_load_dwordx2 v[{vD}:{vD+1}], v{vT}, s[{sWT}:{sWT+3}], 0 offen")
    for r in range(4):
        P(f"v_mov_b32 v{vSENT+r}, -1")
    P(f"s_mov_b32 s{sCs}, {hex(f32bits(SCALE_LOG2E))}")
    vONES = 4
    vCM = 144 + 0
    P("s_waitcnt vmcnt(0)")
    P(f"v_min_u32 v{vD}, -2, v{vD}")
    P(f"v_min_u32 v{vD+1}, -2, v{vD+1}")
    for r in range(4):
        P(f"v_mov_b32 v{vONES+r}, 0x3f803f80")
    vCM = 100000
    P(f"v_mov_b32 v{vT}, 0xff800000")
    P(f"v_mov_b32 v8, 0")
    P(f"v_cndmask_b32 v8, v8, v{vT}, s[{sMG}:{sMG+1}]")
    vCM1 = 8

    def kv_offsets(stepreg):
        P(f"s_lshl_b32 s{sT0}, s{stepreg}, 18")
        P(f"s_add_u32 s{soKF}, s{sT0}, {L.KF}")
        P(f"s_add_u32 s{soVF}, s{sT0}, {L.VF}")
        P(f"s_lshl_b32 s{sT0}, s{sSL}, 11")
        P(f"s_add_u32 s{soVF}, s{soVF}, s{sT0}")
    def kv_prefetch(ldsbase_sreg):
        l3 = P.fresh("pf3"); le = P.fresh("pfe")
        P(f"s_cmp_eq_u32 s{sW}, 3")
        P(f"s_cbranch_scc1 {l3}")
        for n in range(5):
            P(f"s_add_u32 m0, s{ldsbase_sreg}, {n*1024}")
            P(f"s_add_u32 s{sT1}, s{soKF}, {n*1024}")
            P(f"buffer_load_dwordx4 v{vo_kv}, s[{sWS}:{sWS+3}], s{sT1} offen lds")
        P(f"s_branch {le}")
        P.label(l3)
        for n in range(5, 8):
            P(f"s_add_u32 m0, s{ldsbase_sreg}, {n*1024}")
            P(f"s_add_u32 s{sT1}, s{soKF}, {n*1024}")
            P(f"buffer_load_dwordx4 v{vo_kv}, s[{sWS}:{sWS+3}], s{sT1} offen lds")
        for n in range(2):
            P(f"s_add_u32 m0, s{ldsbase_sreg}, {8192 + n*1024}")
            P(f"s_add_u32 s{sT1}, s{soVF}, {n*1024}")
            P(f"buffer_load_dwordx4 v{vo_kv}, s[{sWS}:{sWS+3}], s{sT1} offen lds")
        P.label(le)

    for mode in (0, 1):
        fl = "" if mode == 0 else " sc1"
        tag = f"{name}_m{mode}"
        if mode == 0:
            P(f"s_cmp_lg_u32 s{sMODE}, 0")
            P(f"s_cbranch_scc1 {name}_m1_start")
        P.label(f"{tag}_start")
        P(f"s_lshl_b32 s{sT0}, s{sX}, 14")
        P(f"s_add_u32 s{sT0}, s{sT0}, {L.MEMB}")
        P(f"buffer_store_dwordx2 v[{vD}:{vD+1}], v{vo_memw}, s[{sWS}:{sWS+3}], s{sT0} offen{fl}")
        P(f"s_mov_b32 s{sSTEP}, 0")
        lskip = P.fresh("pf0")
        P(f"s_cmp_lt_u32 s{sW}, 2")
        P(f"s_cbranch_scc1 {lskip}")
        kv_offsets(sSTEP)
        P(f"s_mov_b32 s{sKVW}, {LDS_KV}")
        kv_prefetch(sKVW)
        P.label(lskip)

        def offsets():
            P(f"s_and_b32 s{sT0}, s{sSTEP}, 3")
            P(f"s_add_u32 s{sT1}, s{sSTEP}, 1")
            P(f"s_and_b32 s{sT1}, s{sT1}, 3")
            P(f"s_xor_b32 s{sT2}, s{sT0}, 2")
            P(f"s_lshl_b32 s{sT3}, s{sX}, 14")
            P(f"s_add_u32 s{sT3}, s{sT3}, {L.MEMB}")
            for (dst, sl) in ((soMEMR, sT0), (soMEMW, sT1), (soPM, sT2)):
                P(f"s_lshl_b32 s{dst}, s{sl}, 17")
                P(f"s_add_u32 s{dst}, s{dst}, s{sT3}")
            P(f"s_add_u32 s{sT3}, s{sT3}, {L.QKB - L.MEMB}")
            for (dst, sl) in ((soQK, sT0), (soPQ, sT2)):
                P(f"s_lshl_b32 s{dst}, s{sl}, 17")
                P(f"s_add_u32 s{dst}, s{dst}, s{sT3}")
            P(f"s_lshl_b32 s{sT3}, s{sX}, 13")
            P(f"s_add_u32 s{sT3}, s{sT3}, {L.OXB}")
            for (dst, sl) in ((soOX, sT0), (soPO, sT2)):
                P(f"s_lshl_b32 s{dst}, s{sl}, 16")
                P(f"s_add_u32 s{dst}, s{dst}, s{sT3}")
            P(f"s_lshl_b32 s{soPARTR}, s{sT0}, 18")
            P(f"s_add_u32 s{soPARTR}, s{soPARTR}, {L.PART}")
            P(f"s_lshl_b32 s{sT3}, s{sX}, 15")
            P(f"s_add_u32 s{soPARTW}, s{soPARTR}, s{sT3}")
            P(f"s_lshl_b32 s{soPP}, s{sT2}, 18")
            P(f"s_add_u32 s{soPP}, s{soPP}, {L.PART}")
            P(f"s_add_u32 s{soPP}, s{soPP}, s{sT3}")
            P(f"s_lshl_b32 s{sT0}, s{sSTEP}, 16")
            P(f"s_add_u32 s{soKM}, s{sT0}, {L.KM}")
            P(f"s_add_u32 s{soVM}, s{sT0}, {L.VMT}")
            P(f"s_and_b32 s{sT0}, s{sSTEP}, 1")
            P(f"s_mul_i32 s{sKVR}, s{sT0}, {KVSZ}")
            P(f"s_add_u32 s{sKVR}, s{sKVR}, {LDS_KV}")
            P(f"s_xor_b32 s{sT0}, s{sT0}, 1")
            P(f"s_mul_i32 s{sKVW}, s{sT0}, {KVSZ}")
            P(f"s_add_u32 s{sKVW}, s{sKVW}, {LDS_KV}")
        def stamp(idx):
            if stamps:
                P(f"s_memtime s[{64+2*idx}:{65+2*idx}]")
        def stamp_flush(n):
            if not stamps:
                return
            P("s_waitcnt lgkmcnt(0)")
            for idx in range(n):
                P(f"v_writelane_b32 v{vT}, s{64+2*idx}, {idx}")
            for idx in range(3):
                P(f"v_writelane_b32 v{vT}, s{90+idx}, {13+idx}")
            P(f"v_lshlrev_b32 v{vX}, 2, v{vL}")
            P(f"s_mov_b64 exec, 0xffff")
            P(f"buffer_store_dword v{vT}, v{vX}, s[{sWS}:{sWS+3}], s{soDBG} offen")
            P(f"s_mov_b64 exec, -1")
        def check(regs, retry):
            t = vT
            regs = list(regs)
            P(f"v_max3_u32 v{t}, v{regs[0]}, v{regs[1]}, v{regs[2]}")
            k = 3
            while k < len(regs):
                if k + 1 < len(regs):
                    P(f"v_max3_u32 v{t}, v{t}, v{regs[k]}, v{regs[k+1]}"); k += 2
                else:
                    P(f"v_max_u32 v{t}, v{t}, v{regs[k]}"); k += 1
            P(f"v_cmp_eq_u32 vcc, -1, v{t}")
            P(f"s_cbranch_vccnz {retry}")
        def poll_head(lbl):
            P.label(lbl)
            P(f"s_add_u32 s{sIT}, s{sIT}, 1")
            P(f"s_cmp_gt_u32 s{sIT}, {TMO}")
            P(f"s_cbranch_scc1 {END}")

        LOOP = f"{tag}_loop"
        P.label(LOOP)
        offsets()
        if stamps:
            P(f"s_lshl_b32 s{sT0}, s{sX}, 5")
            P(f"s_add_u32 s{sT0}, s{sT0}, s{sC}")
            P(f"s_lshl_b32 s{sT0}, s{sT0}, 2")
            P(f"s_add_u32 s{sT0}, s{sT0}, s{sW}")
            P(f"s_lshl_b32 s{sT0}, s{sT0}, 6")
            P(f"s_add_u32 s{sT0}, s{sT0}, s{sSTEP}")
            P(f"s_lshl_b32 s{sT0}, s{sT0}, 6")
            P(f"s_add_u32 s{soDBG}, s{sT0}, {L.DBG}")
        stamp(0)
        la = f"{tag}_pa"
        if dly[0]: P(f"s_sleep {dly[0]}")
        poll_head(la)
        for m in range(4):
            P(f"buffer_load_dwordx4 v[{vG+m*4}:{vG+m*4+3}], v{vo_lw}, s[{sWS}:{sWS+3}], s{soMEMR} offen offset:{m*1024} sc1")
        P("s_waitcnt vmcnt(0)")
        for m in range(4):
            P(f"ds_write_b128 v{vo_lw}, v[{vG+m*4}:{vG+m*4+3}] offset:{LDS_M + m*1024}")
        check(range(vG, vG + 16), la)
        stamp(1)
        if stamps: P(f"s_mov_b32 s90, s{sIT}")
        P("s_waitcnt lgkmcnt(0)")
        P("s_barrier")
        stamp(2)
        for m in range(16):
            P(f"ds_read_b128 v[{vMF+m*4}:{vMF+m*4+3}], v{vo_lmf} offset:{LDS_M + m*1024}")
        P(f"buffer_store_dwordx2 v[{vSENT}:{vSENT+1}], v{vo_memw}, s[{sWS}:{sWS+3}], s{soPM} offen{fl}")
        P(f"buffer_store_dwordx2 v[{vSENT}:{vSENT+1}], v{vo_pubqk}, s[{sWS}:{sWS+3}], s{soPQ} offen{fl}")
        for m in range(16):
            P(f"s_waitcnt lgkmcnt({15-m})")
            f = vMF + m * 4
            for par, acc in ((0, vAE), (1, vAO)):
                wb = aWA + (2 * m + par) * 4
                c = "0" if m == 0 else f"v[{acc}:{acc+3}]"
                P(f"v_mfma_f32_16x16x32_bf16 v[{acc}:{acc+3}], a[{wb}:{wb+3}], v[{f}:{f+3}], {c}")
        LB = f"{tag}_notB"
        LJ = f"{tag}_join"
        for r in range(4):
            P(f"v_add_f32_dpp v{vAE+r}, v{vAO+r}, v{vAE+r} row_ror:8 row_mask:0xf bank_mask:0xf")
        P(f"v_cvt_pk_bf16_f32 v{vAE}, v{vAE}, v{vAE+1}")
        P(f"v_cvt_pk_bf16_f32 v{vAE+1}, v{vAE+2}, v{vAE+3}")
        P(f"v_min_u32 v{vAE}, -2, v{vAE}")
        P(f"v_min_u32 v{vAE+1}, -2, v{vAE+1}")
        P(f"buffer_store_dwordx2 v[{vAE}:{vAE+1}], v{vo_pubqk}, s[{sWS}:{sWS+3}], s{soQK} offen{fl}")
        stamp(3)
        P(f"s_cmp_ge_u32 s{sW}, 2")
        P(f"s_cbranch_scc1 {LB}")
        P(f"v_add_u32 v{vT}, s{sKVR}, v{vo_lin}")
        for n in range(8):
            P(f"ds_read_b128 v[{vKT+n*4}:{vKT+n*4+3}], v{vT} offset:{n*1024}")
        P(f"s_lshl_b32 s{sT0}, s{sW}, 10")
        P(f"v_add_u32 v{vT}, s{sT0}, v{vT}")
        P(f"ds_read_b128 v[{vVT}:{vVT+3}], v{vT} offset:8192")
        for m in range(16):
            f = vMF + m * 4
            if early_b and m == dly[1]:
                for ks in range(4):
                    P(f"buffer_load_dwordx4 v[{vR+ks*4}:{vR+ks*4+3}], v{vo_qk}, s[{sWS}:{sWS+3}], s{soQK} offen offset:{ks*1024} sc1")
            for par, acc in ((0, vVE), (1, vVO)):
                wb = aWV + (2 * m + par) * 4
                c = "0" if m == 0 else f"v[{acc}:{acc+3}]"
                P(f"v_mfma_f32_16x16x32_bf16 v[{acc}:{acc+3}], v[{f}:{f+3}], a[{wb}:{wb+3}], {c}")
        for r in range(4):
            P(f"v_mov_b32 v{vO+r}, v{vVO+r}")
        for r in range(4):
            P(f"v_permlane32_swap_b32 v{vO+r}, v{vVE+r}")
        for r in range(4):
            P(f"v_add_f32 v{vO+r}, v{vO+r}, v{vVO+r}")
        vVM = vVE
        P(f"v_cvt_pk_bf16_f32 v{vVM}, v{vO}, v{vO+1}")
        P(f"v_cvt_pk_bf16_f32 v{vVM+1}, v{vO+2}, v{vO+3}")
        P(f"buffer_store_dwordx2 v[{vVM}:{vVM+1}], v{vo_vm}, s[{sWS}:{sWS+3}], s{soVM} offen")
        P(f"s_cmp_eq_u32 s{sSTEP}, {nsteps-1}")
        P(f"s_cbranch_scc1 {END}")
        P(f"buffer_store_dwordx2 v[{vSENT}:{vSENT+1}], v{vo_pubo}, s[{sWS}:{sWS+3}], s{soPO} offen{fl}")
        for r in range(4):
            P(f"v_mov_b32 v{vS+r}, v{vCM1}")
        stamp(4)
        lb = f"{tag}_pb"
        lb2 = f"{tag}_pb2"
        if early_b:
            P("s_waitcnt vmcnt(2)")
            if stamps: P("s_memtime s[86:87]")
            P(f"s_branch {lb2}")
        poll_head(lb)
        for ks in range(4):
            P(f"buffer_load_dwordx4 v[{vR+ks*4}:{vR+ks*4+3}], v{vo_qk}, s[{sWS}:{sWS+3}], s{soQK} offen offset:{ks*1024} sc1")
        P("s_waitcnt vmcnt(0)")
        P.label(lb2)
        check(range(vR, vR + 16), lb)
        stamp(5)
        if stamps: P(f"s_mov_b32 s91, s{sIT}")
        P("s_waitcnt lgkmcnt(0)")
        for ks in range(4):
            q = vR + ks * 4
            for tl in range(3):
                d = vS + tl * 4
                aop = q if tl == 0 else (vKT + ((tl - 1) * 4 + ks) * 4)
                c = (f"v[{d}:{d+3}]" if tl == 0 else "0") if ks == 0 else f"v[{d}:{d+3}]"
                P(f"v_mfma_f32_16x16x32_bf16 v[{d}:{d+3}], v[{aop}:{aop+3}], v[{q}:{q+3}], {c}")
        mx = vX
        P(f"v_max3_f32 v{mx}, v{vS}, v{vS+1}, v{vS+2}")
        for k in range(3, 11, 2):
            P(f"v_max3_f32 v{mx}, v{mx}, v{vS+k}, v{vS+k+1}")
        P(f"v_max_f32 v{mx}, v{mx}, v{vS+11}")
        P(f"v_mov_b32 v{mx+1}, v{mx}")
        P(f"v_permlane32_swap_b32 v{mx}, v{mx+1}")
        P(f"v_max_f32 v{mx}, v{mx}, v{mx+1}")
        P(f"v_mov_b32 v{mx+1}, v{mx}")
        P(f"v_permlane16_swap_b32 v{mx}, v{mx+1}")
        P(f"v_max_f32 v{mx}, v{mx}, v{mx+1}")
        P(f"v_mul_f32 v{mx}, s{sCs}, v{mx}")
        for k in range(4):
            P(f"v_fma_f32 v{vS+k}, v{vS+k}, s{sCs}, -v{mx}")
        for k in range(4):
            P(f"v_exp_f32 v{vS+k}, v{vS+k}")
        P(f"v_cvt_pk_bf16_f32 v{vP}, v{vS}, v{vS+1}")
        P(f"v_cvt_pk_bf16_f32 v{vP+1}, v{vS+2}, v{vS+3}")
        for k in range(4, 8):
            P(f"v_fma_f32 v{vS+k}, v{vS+k}, s{sCs}, -v{mx}")
        P(f"v_mfma_f32_16x16x16_bf16 v[{vSUM}:{vSUM+3}], v[{vONES}:{vONES+1}], v[{vP}:{vP+1}], 0")
        for k in range(8, 12):
            P(f"v_fma_f32 v{vS+k}, v{vS+k}, s{sCs}, -v{mx}")
        P(f"v_mfma_f32_16x16x16_bf16 v[{vO}:{vO+3}], v[{vVM}:{vVM+1}], v[{vP}:{vP+1}], 0")
        for k in range(4, 12):
            P(f"v_exp_f32 v{vS+k}, v{vS+k}")
        for k in range(4):
            P(f"v_cvt_pk_bf16_f32 v{vP+2+k}, v{vS+4+2*k}, v{vS+5+2*k}")
        P(f"v_mfma_f32_16x16x32_bf16 v[{vSUM}:{vSUM+3}], v[{vONES}:{vONES+3}], v[{vP+2}:{vP+5}], v[{vSUM}:{vSUM+3}]")
        P(f"v_mfma_f32_16x16x32_bf16 v[{vO}:{vO+3}], v[{vVT}:{vVT+3}], v[{vP+2}:{vP+5}], v[{vO}:{vO+3}]")
        P(f"v_rcp_f32 v{mx}, v{vSUM}")
        for r in range(4):
            P(f"v_mul_f32 v{vO+r}, v{vO+r}, v{mx}")
        P(f"v_cvt_pk_bf16_f32 v{vO}, v{vO}, v{vO+1}")
        P(f"v_cvt_pk_bf16_f32 v{vO+1}, v{vO+2}, v{vO+3}")
        P(f"v_min_u32 v{vO}, -2, v{vO}")
        P(f"v_min_u32 v{vO+1}, -2, v{vO+1}")
        P(f"buffer_store_dwordx2 v[{vO}:{vO+1}], v{vo_pubo}, s[{sWS}:{sWS+3}], s{soOX} offen{fl}")
        P(f"s_branch {LJ}")
        P.label(LB)
        P(f"buffer_store_dwordx2 v[{vAE}:{vAE+1}], v{vo_km}, s[{sWS}:{sWS+3}], s{soKM} offen")
        P(f"s_cmp_eq_u32 s{sSTEP}, {nsteps-1}")
        P(f"s_cbranch_scc1 {END}")
        P(f"s_add_u32 s{sT1}, s{sSTEP}, 1")
        kv_offsets(sT1)
        kv_prefetch(sKVW)
        stamp(4)
        stamp(5)
        if stamps: P(f"s_mov_b32 s91, s{sIT}")
        P.label(LJ)
        stamp(6)
        P("s_barrier")
        stamp(7)
        lc = f"{tag}_pc"
        if dly[2]: P(f"s_sleep {dly[2]}")
        poll_head(lc)
        for m in range(2):
            P(f"buffer_load_dwordx4 v[{vG+m*4}:{vG+m*4+3}], v{vo_lo}, s[{sWS}:{sWS+3}], s{soOX} offen offset:{m*1024} sc1")
        P("s_waitcnt vmcnt(0)")
        for m in range(2):
            P(f"ds_write_b128 v{vo_lo}, v[{vG+m*4}:{vG+m*4+3}] offset:{LDS_O + m*1024}")
        check(range(vG, vG + 8), lc)
        stamp(8)
        P("s_waitcnt lgkmcnt(0)")
        P("s_barrier")
        for m in range(8):
            P(f"ds_read_b128 v[{vMF+m*4}:{vMF+m*4+3}], v{vo_lmf} offset:{LDS_O + m*1024}")
        for m in range(8):
            P(f"s_waitcnt lgkmcnt({7-m})")
            f = vMF + m * 4
            for par, acc in ((0, vAE), (1, vAO)):
                wb = vWO + (2 * m + par) * 4
                c = "0" if m == 0 else f"v[{acc}:{acc+3}]"
                P(f"v_mfma_f32_16x16x32_bf16 v[{acc}:{acc+3}], v[{wb}:{wb+3}], v[{f}:{f+3}], {c}")
        for r in range(4):
            P(f"v_add_f32_dpp v{vAE+r}, v{vAO+r}, v{vAE+r} row_ror:8 row_mask:0xf bank_mask:0xf")
        if partbf16:
            P(f"v_cvt_pk_bf16_f32 v{vAE}, v{vAE}, v{vAE+1}")
            P(f"v_cvt_pk_bf16_f32 v{vAE+1}, v{vAE+2}, v{vAE+3}")
            P(f"v_min_u32 v{vAE}, -2, v{vAE}")
            P(f"v_min_u32 v{vAE+1}, -2, v{vAE+1}")
            P(f"buffer_store_dwordx2 v[{vAE}:{vAE+1}], v{vo_part}, s[{sWS}:{sWS+3}], s{soPARTW} offen sc1")
            P(f"buffer_store_dwordx2 v[{vSENT}:{vSENT+1}], v{vo_part}, s[{sWS}:{sWS+3}], s{soPP} offen sc1")
        else:
            for r in range(4):
                P(f"v_min_u32 v{vAE+r}, -2, v{vAE+r}")
            P(f"buffer_store_dwordx4 v[{vAE}:{vAE+3}], v{vo_part}, s[{sWS}:{sWS+3}], s{soPARTW} offen sc1")
            P(f"buffer_store_dwordx4 v[{vSENT}:{vSENT+3}], v{vo_part}, s[{sWS}:{sWS+3}], s{soPP} offen sc1")
        stamp(9)
        ld = f"{tag}_pd"
        if dly[3]: P(f"s_sleep {dly[3]}")
        poll_head(ld)
        nd = 2 if partbf16 else 4
        for m in range(4):
            P(f"buffer_load_dwordx{nd} v[{vD+m*nd}:{vD+m*nd+nd-1}], v{vo_d+m}, s[{sWS}:{sWS+3}], s{soPARTR} offen sc1")
        P("s_waitcnt vmcnt(0)")
        check(range(vD, vD + 4 * nd), ld)
        stamp(10)
        if stamps: P(f"s_mov_b32 s92, s{sIT}")
        if partbf16:
            U = vD + 8
            for m in range(4):
                for h2 in range(2):
                    P(f"v_lshlrev_b32 v{U+m*4+h2*2}, 16, v{vD+m*2+h2}")
                    P(f"v_and_b32 v{U+m*4+h2*2+1}, 0xffff0000, v{vD+m*2+h2}")
            B = U
        else:
            B = vD
        for r in range(4):
            P(f"v_add_f32 v{B+r}, v{B+r}, v{B+4+r}")
            P(f"v_add_f32 v{B+8+r}, v{B+8+r}, v{B+12+r}")
        for r in range(4):
            P(f"v_add_f32 v{B+r}, v{B+r}, v{B+8+r}")
        for r in range(4):
            P(f"v_mov_b32 v{B+4+r}, v{B+r}")
        for r in range(4):
            P(f"v_permlane32_swap_b32 v{B+r}, v{B+4+r}")
        for r in range(4):
            P(f"v_add_f32 v{B+r}, v{B+r}, v{B+4+r}")
        P(f"v_cvt_pk_bf16_f32 v{B}, v{B}, v{B+1}")
        P(f"v_cvt_pk_bf16_f32 v{B+1}, v{B+2}, v{B+3}")
        P(f"v_min_u32 v{B}, -2, v{B}")
        P(f"v_min_u32 v{B+1}, -2, v{B+1}")
        P(f"buffer_store_dwordx2 v[{B}:{B+1}], v{vo_memw}, s[{sWS}:{sWS+3}], s{soMEMW} offen{fl}")
        stamp(12)
        stamp_flush(13)
        P(f"s_add_u32 s{sSTEP}, s{sSTEP}, 1")
        P(f"s_branch {LOOP}")
    P.label(END)
    P("s_endpgm")
    return dict(name=name, vgpr=512, accum=256, sgpr=96, lds=131072)
```

```python
from asmlib import *
import layout as L
from chain import srd, f32bits

KA = dict(x=0, mem0=8, Wq=16, Wk=24, Wv=32, Wo=40, w1=64, w2=72, w3=80, w4=88, out=96, dbg=104, ws=112)

GELU_K1 = -2.0 * 0.7978845608028654 * 1.4426950408889634
GELU_K3 = GELU_K1 * 0.044715

class GemmCfg:
    def __init__(self, TM, TN, K, lda, ldb, orient, epi, shift=False):
        self.TM, self.TN, self.K, self.lda, self.ldb = TM, TN, K, lda, ldb
        self.orient = orient
        self.epi = epi
        self.shift = shift
        self.FM, self.FN = TM // 64, TN // 64
        self.ABYTES, self.BBYTES = TM * 128, 64 * TN * 2
        self.STAGE = self.ABYTES + self.BBYTES
        st = 1
        while st < self.STAGE: st *= 2
        self.SS = st
        self.lds = st + self.STAGE

class R:
    sWS = 4
    sB = 8
    sO = 12
    sW, sWM, sWN = 16, 17, 18
    sAoff, sBoff = 19, 20
    sT = 21
    sM0A, sM0B = 22, 23
    sT0, sT1, sT2, sT3 = 24, 25, 26, 27
    sROW0, sCOL0 = 28, 29
    sK1, sK3 = 30, 31
    sABASE = 32
    sE0, sE1, sE2 = 33, 34, 35
    vL = 0
    vT = 1
    vAd = 8
    vBd = 10
    vXa = 12
    vWa = 16
    vEo = 20
    vX = 32
    vW = 64
    vE = 96

def gemm_setup_lane(P, c):
    r = R
    T = r.vT
    P(f"s_lshr_b32 s{r.sWM}, s{r.sW}, 1")
    P(f"s_and_b32 s{r.sWN}, s{r.sW}, 1")
    P(f"v_lshrrev_b32 v{T}, 3, v{r.vL}")
    P(f"s_mov_b32 s{r.sT0}, {c.lda}")
    P(f"v_mul_lo_u32 v{T}, v{T}, s{r.sT0}")
    P(f"v_lshrrev_b32 v{T+1}, 4, v{r.vL}")
    P(f"v_and_b32 v{T+2}, 7, v{r.vL}")
    for par in range(2):
        P(f"v_add_u32 v{T+3}, {4*par}, v{T+1}")
        P(f"v_xor_b32 v{T+3}, v{T+3}, v{T+2}")
        P(f"v_lshl_add_u32 v{r.vAd+par}, v{T+3}, 4, v{T}")
    rb = c.TN * 2
    upr = rb // 16
    rpi = 64 // upr
    P(f"v_lshrrev_b32 v{T}, {upr.bit_length()-1}, v{r.vL}")
    P(f"v_and_b32 v{T+2}, {upr-1}, v{r.vL}")
    P(f"s_mov_b32 s{r.sT0}, {c.ldb}")
    P(f"v_mul_lo_u32 v{T+1}, v{T}, s{r.sT0}")
    for par in range(2):
        if rb >= 256:
            P(f"v_add_u32 v{T+3}, {(par*rpi) & 3}, v{T}")
            P(f"v_and_b32 v{T+3}, 3, v{T+3}")
            P(f"v_lshlrev_b32 v{T+3}, 2, v{T+3}")
        else:
            P(f"v_bfe_u32 v{T+3}, v{T}, 1, 1")
            P(f"v_lshlrev_b32 v{T+3}, 2, v{T+3}")
        P(f"v_xor_b32 v{T+3}, v{T+3}, v{T+2}")
        P(f"v_lshl_add_u32 v{r.vBd+par}, v{T+3}, 4, v{T+1}")
    P(f"v_and_b32 v{T}, 31, v{r.vL}")
    P(f"v_lshrrev_b32 v{T+1}, 5, v{r.vL}")
    P(f"v_bfe_u32 v{T+2}, v{T}, 1, 3")
    P(f"s_mul_i32 s{r.sT0}, s{r.sWM}, {c.TM//2*128}")
    P(f"v_lshlrev_b32 v{T+3}, 7, v{T}")
    P(f"v_add_u32 v{T+3}, s{r.sT0}, v{T+3}")
    for ks in range(4):
        P(f"v_add_u32 v{T+4}, {2*ks}, v{T+1}")
        P(f"v_xor_b32 v{T+4}, v{T+4}, v{T+2}")
        P(f"v_lshl_add_u32 v{r.vXa+ks}, v{T+4}, 4, v{T+3}")
    P(f"v_and_b32 v{T}, 15, v{r.vL}")
    P(f"v_lshrrev_b32 v{T+1}, 2, v{T}")
    P(f"v_lshrrev_b32 v{T+2}, 5, v{r.vL}")
    P(f"v_lshl_add_u32 v{T+2}, v{T+2}, 3, v{T+1}")
    P(f"v_mul_u32_u24 v{T+2}, {rb}, v{T+2}")
    P(f"v_and_b32 v{T+3}, 3, v{T}")
    P(f"v_lshl_add_u32 v{T+2}, v{T+3}, 3, v{T+2}")
    P(f"v_bfe_u32 v{T+3}, v{r.vL}, 4, 1")
    P(f"v_lshl_add_u32 v{T+2}, v{T+3}, 5, v{T+2}")
    P(f"v_add_u32 v{T+2}, {c.ABYTES}, v{T+2}")
    nW = min(c.FN, 4)
    for j in range(nW):
        if rb >= 256:
            P(f"s_mul_i32 s{r.sT0}, s{r.sWN}, {c.FN}")
            P(f"s_add_u32 s{r.sT0}, s{r.sT0}, {j}")
            P(f"v_xor_b32 v{T+3}, s{r.sT0}, v{T+1}")
        else:
            P(f"v_bfe_u32 v{T+3}, v{T+1}, 1, 1")
            P(f"v_xor_b32 v{T+3}, s{r.sWN}, v{T+3}")
        P(f"v_lshl_add_u32 v{r.vWa+j}, v{T+3}, 6, v{T+2}")
    P(f"s_mul_i32 s{r.sM0A}, s{r.sW}, {c.ABYTES//4}")
    P(f"s_mul_i32 s{r.sM0B}, s{r.sW}, {c.BBYTES//4}")
    P(f"s_add_u32 s{r.sM0B}, s{r.sM0B}, {c.ABYTES}")

def dma_list(c):
    r = R
    out = []
    rb = c.TN * 2; upr = rb // 16; rpi = 64 // upr
    nA, nB = c.TM // 32, c.TN // 32
    for n in range(nA):
        out.append([f"s_add_u32 m0, s{r.sM0A}, {n*1024}",
                    f"s_add_u32 s{r.sT0}, s{r.sAoff}, {n*8*c.lda}",
                    f"buffer_load_dwordx4 v{r.vAd + (n & 1)}, s[{r.sWS}:{r.sWS+3}], s{r.sT0} offen lds"])
    for n in range(nB):
        out.append([f"s_add_u32 m0, s{r.sM0B}, {n*1024}",
                    f"s_add_u32 s{r.sT1}, s{r.sBoff}, {n*rpi*c.ldb}",
                    f"buffer_load_dwordx4 v{r.vBd + (n & 1)}, s[{r.sB}:{r.sB+3}], s{r.sT1} offen lds"])
    return out

def advance(P, c, tile_sreg=None):
    r = R
    if c.shift:
        pass
    P(f"s_add_u32 s{r.sAoff}, s{r.sAoff}, 128")
    P(f"s_add_u32 s{r.sBoff}, s{r.sBoff}, {64*c.ldb}")
    P(f"s_xor_b32 s{r.sM0A}, s{r.sM0A}, {c.SS}")
    P(f"s_xor_b32 s{r.sM0B}, s{r.sM0B}, {c.SS}")

SHIFTS = (-1, 1, -2, 2)

def frag_reads(c, ks, pset):
    r = R
    out = []
    rb = c.TN * 2
    for mf in range(c.FM):
        d = r.vX + (pset * c.FM + mf) * 4
        out.append(f"ds_read_b128 v[{d}:{d+3}], v{r.vXa+ks} offset:{mf*4096}")
    for nf in range(c.FN):
        d = r.vW + (pset * c.FN + nf) * 4
        off = ks * 16 * rb
        out.append(f"ds_read_b64_tr_b16 v[{d}:{d+1}], v{r.vWa+nf} offset:{off}")
        out.append(f"ds_read_b64_tr_b16 v[{d+2}:{d+3}], v{r.vWa+nf} offset:{off + 4*rb}")
    return out

def mfmas(c, pset):
    r = R
    out = []
    for mf in range(c.FM):
        for nf in range(c.FN):
            acc = (mf * c.FN + nf) * 16
            x = r.vX + (pset * c.FM + mf) * 4
            w = r.vW + (pset * c.FN + nf) * 4
            A, B = (w, x) if c.orient == "nm" else (x, w)
            out.append(f"v_mfma_f32_32x32x16_bf16 a[{acc}:{acc+15}], v[{A}:{A+3}], v[{B}:{B+3}], a[{acc}:{acc+15}]")
    return out

def interleave(P, mf, others):
    n = len(mf)
    k = 0
    for i, m in enumerate(mf):
        P(m)
        upto = (len(others) * (i + 1) + n - 1) // n
        while k < upto and k < len(others):
            o = others[k]; k += 1
            if isinstance(o, list):
                for x in o: P(x)
            else:
                P(o)
    while k < len(others):
        o = others[k]; k += 1
        if isinstance(o, list):
            for x in o: P(x)
        else:
            P(o)

def gemm_tile(P, c, tag):
    r = R
    NT = c.K // 64
    dm = dma_list(c)
    def shift_adj(tile_from, tile_to):
        pass
    def issue_tile():
        for grp in dm:
            for x in grp: P(x)
    if c.shift:
        P(f"s_sub_u32 s{r.sAoff}, s{r.sAoff}, {c.lda}")
    issue_tile(); advance(P, c)
    issue_tile(); advance(P, c)
    for i in range(c.FM * c.FN * 16):
        P(f"v_accvgpr_write_b32 a{i}, 0")
    P(f"s_waitcnt vmcnt({len(dm)})")
    P("s_barrier")
    for x in frag_reads(c, 0, 0):
        P(x)
    P(f"s_mov_b32 s{r.sT}, 0")
    LOOP = f"{tag}_kloop"
    P.label(LOOP)
    for ks in range(3):
        P("s_waitcnt lgkmcnt(0)")
        interleave(P, mfmas(c, ks & 1), frag_reads(c, ks + 1, (ks + 1) & 1))
    P("s_waitcnt lgkmcnt(0) vmcnt(0)")
    P("s_barrier")
    for j in range(4):
        P(f"v_xor_b32 v{r.vXa+j}, {c.SS}, v{r.vXa+j}")
    for j in range(min(c.FN, 4)):
        P(f"v_xor_b32 v{r.vWa+j}, {c.SS}, v{r.vWa+j}")
    SK = f"{tag}_nodma"
    P(f"s_cmp_ge_u32 s{r.sT}, {NT-2}")
    P(f"s_cbranch_scc1 {SK}")
    if c.shift:
        LN = f"{tag}_nosh"
        P(f"s_add_u32 s{r.sT2}, s{r.sT}, 2")
        P(f"s_and_b32 s{r.sT3}, s{r.sT2}, 3")
        P(f"s_cmp_lg_u32 s{r.sT3}, 0")
        P(f"s_cbranch_scc1 {LN}")
        P(f"s_lshr_b32 s{r.sT2}, s{r.sT2}, 2")
        P(f"s_mov_b32 s{r.sT3}, {4*c.lda}")
        P(f"s_cmp_eq_u32 s{r.sT2}, 1")
        P(f"s_cselect_b32 s{r.sT3}, {2*c.lda}, s{r.sT3}")
        P(f"s_cmp_eq_u32 s{r.sT2}, 2")
        P(f"s_cselect_b32 s{r.sT3}, {(-3*c.lda) & 0xffffffff}, s{r.sT3}")
        P(f"s_add_u32 s{r.sAoff}, s{r.sAoff}, s{r.sT3}")
        P.label(LN)
    oth = frag_reads(c, 0, 0) + dm
    interleave(P, mfmas(c, 1), oth)
    advance(P, c)
    P(f"s_add_u32 s{r.sT}, s{r.sT}, 1")
    P(f"s_branch {LOOP}")
    P.label(SK)
    interleave(P, mfmas(c, 1), frag_reads(c, 0, 0))
    P(f"s_add_u32 s{r.sT}, s{r.sT}, 1")
    P(f"s_cmp_lt_u32 s{r.sT}, {NT}")
    P(f"s_cbranch_scc1 {LOOP}")
    P("s_waitcnt lgkmcnt(0)")
    P("s_barrier")

def gelu_pair(P, x0, x1, t, r):
    for x, tt in ((x0, t), (x1, t + 1)):
        P(f"v_mul_f32 v{tt}, v{x}, v{x}")
    for x, tt in ((x0, t), (x1, t + 1)):
        P(f"v_fma_f32 v{tt}, v{tt}, s{r.sK3}, v{t+2}")
    for x, tt in ((x0, t), (x1, t + 1)):
        P(f"v_mul_f32 v{tt}, v{tt}, v{x}")
    for x, tt in ((x0, t), (x1, t + 1)):
        P(f"v_exp_f32 v{tt}, v{tt}")
    for x, tt in ((x0, t), (x1, t + 1)):
        P(f"v_add_f32 v{tt}, 1.0, v{tt}")
    for x, tt in ((x0, t), (x1, t + 1)):
        P(f"v_rcp_f32 v{tt}, v{tt}")
    for x, tt in ((x0, t), (x1, t + 1)):
        P(f"v_mul_f32 v{x}, v{x}, v{tt}")

def round_bf16_pair(P, x0, x1, tmp):
    P(f"v_cvt_pk_bf16_f32 v{tmp}, v{x0}, v{x1}")
    P(f"v_lshlrev_b32 v{x0}, 16, v{tmp}")
    P(f"v_and_b32 v{x1}, 0xffff0000, v{tmp}")

def epilogue_nm(P, c, kind):
    r = R
    E = r.vE
    T = r.vT
    k = kind[0]
    P(f"v_and_b32 v{T}, 31, v{r.vL}")
    P(f"v_lshrrev_b32 v{T+1}, 5, v{r.vL}")
    if k == "frag":
        P(f"v_lshrrev_b32 v{T+2}, 4, v{T}")
        P(f"v_lshlrev_b32 v{T+2}, 12, v{T+2}")
        P(f"v_and_b32 v{T+3}, 15, v{T}")
        P(f"v_lshl_add_u32 v{T+2}, v{T+3}, 4, v{T+2}")
        P(f"v_lshl_add_u32 v{r.vEo}, v{T+1}, 8, v{T+2}")
        P(f"s_mul_i32 s{r.sT0}, s{r.sWM}, {c.FM*262144}")
        WN = c.TN // 2
        if WN >= 128:
            P(f"s_mul_i32 s{r.sT1}, s{r.sWN}, {WN//128*8192}")
        else:
            P(f"s_mul_i32 s{r.sT1}, s{r.sWN}, {WN//32*1024}")
        P(f"s_add_u32 s{r.sT0}, s{r.sT0}, s{r.sT1}")
        P(f"s_add_u32 s{r.sE0}, s{r.sE0}, s{r.sT0}")
    else:
        ldo = kind[1]
        P(f"s_mov_b32 s{r.sT0}, {ldo}")
        P(f"v_mul_lo_u32 v{T+2}, v{T}, s{r.sT0}")
        P(f"v_lshl_add_u32 v{r.vEo}, v{T+1}, 4, v{T+2}")
        P(f"s_mul_i32 s{r.sT0}, s{r.sWM}, {c.TM//2*ldo}")
        P(f"s_mul_i32 s{r.sT1}, s{r.sWN}, {c.TN}")
        P(f"s_add_u32 s{r.sT0}, s{r.sT0}, s{r.sT1}")
        for e in (r.sE0, r.sE1, r.sE2):
            P(f"s_add_u32 s{e}, s{e}, s{r.sT0}")
    if k == "gelu":
        P(f"s_mov_b32 s{r.sK3}, {hex(f32bits(GELU_K3))}")
        P(f"v_mov_b32 v{E+34}, {hex(f32bits(GELU_K1))}")
    for mf in range(c.FM):
        for nf in range(c.FN):
            acc = (mf * c.FN + nf) * 16
            V = E
            if k in ("res1", "res2"):
                ldo = kind[1]
                for b in range(2):
                    off = f"{mf*32*ldo + nf*64 + b*32}"
                    P(f"s_add_u32 s{r.sT0}, s{r.sE1}, {off}")
                    srdn = r.sO if (k == "res1" and kind[2] == "x") else r.sWS
                    P(f"buffer_load_dwordx4 v[{E+40+b*4}:{E+43+b*4}], v{r.vEo}, s[{srdn}:{srdn+3}], s{r.sT0} offen")
                    if k == "res2":
                        P(f"s_add_u32 s{r.sT1}, s{r.sE2}, {off}")
                        P(f"buffer_load_dwordx4 v[{E+48+b*4}:{E+51+b*4}], v{r.vEo}, s[{r.sWS}:{r.sWS+3}], s{r.sT1} offen")
            for i in range(16):
                P(f"v_accvgpr_read_b32 v{V+i}, a{acc+i}")
            if k == "gelu":
                for i in range(0, 16, 2):
                    round_bf16_pair(P, V + i, V + i + 1, E + 35)
                    gelu_pair(P, V + i, V + i + 1, E + 32, r)
            Pk = E + 16
            for a4 in range(4):
                P(f"v_cvt_pk_bf16_f32 v{Pk+2*a4}, v{V+4*a4}, v{V+4*a4+1}")
                P(f"v_cvt_pk_bf16_f32 v{Pk+2*a4+1}, v{V+4*a4+2}, v{V+4*a4+3}")
            for b in range(2):
                P(f"v_permlane32_swap_b32 v{Pk+4*b}, v{Pk+4*b+2}")
                P(f"v_permlane32_swap_b32 v{Pk+4*b+1}, v{Pk+4*b+3}")
            if k in ("res1", "res2"):
                P("s_waitcnt vmcnt(0)")
                for b in range(2):
                    for j in range(4):
                        d = Pk + 4 * b + j
                        x = E + 40 + 4 * b + j
                        P(f"v_lshlrev_b32 v{E+56}, 16, v{d}")
                        P(f"v_and_b32 v{E+57}, 0xffff0000, v{d}")
                        P(f"v_lshlrev_b32 v{E+58}, 16, v{x}")
                        P(f"v_and_b32 v{E+59}, 0xffff0000, v{x}")
                        P(f"v_add_f32 v{E+56}, v{E+56}, v{E+58}")
                        P(f"v_add_f32 v{E+57}, v{E+57}, v{E+59}")
                        if k == "res2":
                            y = E + 48 + 4 * b + j
                            P(f"v_cvt_pk_bf16_f32 v{d}, v{E+56}, v{E+57}")
                            P(f"v_lshlrev_b32 v{E+56}, 16, v{d}")
                            P(f"v_and_b32 v{E+57}, 0xffff0000, v{d}")
                            P(f"v_lshlrev_b32 v{E+58}, 16, v{y}")
                            P(f"v_and_b32 v{E+59}, 0xffff0000, v{y}")
                            P(f"v_add_f32 v{E+56}, v{E+56}, v{E+58}")
                            P(f"v_add_f32 v{E+57}, v{E+57}, v{E+59}")
                        P(f"v_cvt_pk_bf16_f32 v{d}, v{E+56}, v{E+57}")
            for b in range(2):
                if k == "frag":
                    off = mf * 262144 + (nf // 4) * 8192 + (nf % 4) * 1024 + b * 512
                    srdn = r.sWS
                else:
                    off = mf * 32 * kind[1] + nf * 64 + b * 32
                    srdn = r.sO if (k == "res2") else r.sWS
                P(f"s_add_u32 s{r.sT0}, s{r.sE0}, {off}")
                P(f"buffer_store_dwordx4 v[{Pk+4*b}:{Pk+4*b+3}], v{r.vEo}, s[{srdn}:{srdn+3}], s{r.sT0} offen")
            P("s_nop 1")

def epilogue_vfrag(P, c):
    r = R
    E = r.vE; T = r.vT
    P(f"v_and_b32 v{T}, 31, v{r.vL}")
    P(f"v_lshrrev_b32 v{T+1}, 5, v{r.vL}")
    P(f"v_lshrrev_b32 v{T+2}, 4, v{T}")
    P(f"v_lshlrev_b32 v{T+2}, 10, v{T+2}")
    P(f"v_and_b32 v{T+3}, 15, v{T}")
    P(f"v_lshl_add_u32 v{T+2}, v{T+3}, 4, v{T+2}")
    P(f"v_lshl_add_u32 v{r.vEo}, v{T+1}, 8, v{T+2}")
    P(f"s_mul_i32 s{r.sT0}, s{r.sWM}, {c.FM*262144}")
    WN = c.TN // 2
    if WN >= 128:
        P(f"s_mul_i32 s{r.sT1}, s{r.sWN}, {WN//128*8192}")
    else:
        P(f"s_mul_i32 s{r.sT1}, s{r.sWN}, {WN//32*2048}")
    P(f"s_add_u32 s{r.sT0}, s{r.sT0}, s{r.sT1}")
    P(f"s_add_u32 s{r.sE0}, s{r.sE0}, s{r.sT0}")
    for mf in range(c.FM):
        for nf in range(c.FN):
            acc = (mf * c.FN + nf) * 16
            V = E
            for i in range(16):
                P(f"v_accvgpr_read_b32 v{V+i}, a{acc+i}")
            Pk = E + 16
            for ch, (a0, a1) in enumerate(((0, 2), (1, 3))):
                P(f"v_cvt_pk_bf16_f32 v{Pk+4*ch}, v{V+4*a0}, v{V+4*a0+1}")
                P(f"v_cvt_pk_bf16_f32 v{Pk+4*ch+1}, v{V+4*a0+2}, v{V+4*a0+3}")
                P(f"v_cvt_pk_bf16_f32 v{Pk+4*ch+2}, v{V+4*a1}, v{V+4*a1+1}")
                P(f"v_cvt_pk_bf16_f32 v{Pk+4*ch+3}, v{V+4*a1+2}, v{V+4*a1+3}")
            for ch in range(2):
                off = mf * 262144 + (nf // 4) * 8192 + (nf % 4) * 2048 + ch * 512
                P(f"s_add_u32 s{r.sT0}, s{r.sE0}, {off}")
                P(f"buffer_store_dwordx4 v[{Pk+4*ch}:{Pk+4*ch+3}], v{r.vEo}, s[{r.sWS}:{r.sWS+3}], s{r.sT0} offen")
            P("s_nop 1")

def kernel_head(P, name, NWG):
    r = R
    P.text(f".globl {name}")
    P.text(".p2align 8")
    P.text(f".type {name},@function")
    P.label(name)
    P(f"s_cmp_ge_u32 s2, {NWG}")
    P(f"s_cbranch_scc1 {name}_end")

def gen_gemm(P, name, c, MT, NT, a_off, b_args, epi, e0=None, e1=None, e2=None, o_arg=None):
    r = R
    NWG = MT * NT
    kernel_head(P, name, NWG)
    P(f"s_load_dwordx2 s[36:37], s[0:1], {KA['ws']}")
    for i, b in enumerate(b_args):
        P(f"s_load_dwordx2 s[{38+2*i}:{39+2*i}], s[0:1], {b}")
    if o_arg is not None:
        P(f"s_load_dwordx2 s[46:47], s[0:1], {o_arg}")
    P(f"v_lshrrev_b32 v{r.vT}, 6, v0")
    P(f"v_readfirstlane_b32 s{r.sW}, v{r.vT}")
    P(f"v_and_b32 v{r.vL}, 63, v0")
    P(f"s_and_b32 s{r.sROW0}, s2, {MT-1}")
    P(f"s_lshr_b32 s{r.sCOL0}, s2, {MT.bit_length()-1}")
    P("s_waitcnt lgkmcnt(0)")
    srd(P, r.sWS, 36, L.WS_SIZE)
    ntper = NT // len(b_args)
    if len(b_args) == 1:
        srd(P, r.sB, 38, c.K * c.ldb)
        P(f"s_mov_b32 s48, 0")
    else:
        P(f"s_mov_b32 s48, 0")
        for i in range(1, len(b_args)):
            P(f"s_cmp_ge_u32 s{r.sCOL0}, {i*ntper}")
            P(f"s_cselect_b32 s38, s{38+2*i}, s38")
            P(f"s_cselect_b32 s39, s{39+2*i}, s39")
            P(f"s_cselect_b32 s48, {i}, s48")
        srd(P, r.sB, 38, c.K * c.ldb)
        P(f"s_mul_i32 s{r.sT0}, s48, {ntper}")
        P(f"s_sub_u32 s{r.sCOL0}, s{r.sCOL0}, s{r.sT0}")
    if o_arg is not None:
        srd(P, r.sO, 46, 2048 * 2048)
    P(f"s_mul_i32 s{r.sROW0}, s{r.sROW0}, {c.TM}")
    P(f"s_mul_i32 s{r.sCOL0}, s{r.sCOL0}, {c.TN}")
    gemm_setup_lane(P, c)
    P(f"s_mul_i32 s{r.sT0}, s{r.sW}, {c.TM//4}")
    P(f"s_add_u32 s{r.sT0}, s{r.sT0}, s{r.sROW0}")
    P(f"s_mul_i32 s{r.sAoff}, s{r.sT0}, {c.lda}")
    P(f"s_add_u32 s{r.sAoff}, s{r.sAoff}, {a_off}")
    P(f"s_mul_i32 s{r.sBoff}, s{r.sW}, {16*c.ldb}")
    P(f"s_lshl_b32 s{r.sT0}, s{r.sCOL0}, 1")
    P(f"s_add_u32 s{r.sBoff}, s{r.sBoff}, s{r.sT0}")
    return NWG

def finish_kernel(P, name):
    P.label(f"{name}_end")
    P("s_endpgm")

def gen_qkv(P, name="qkv_kernel", TM=256, TN=256):
    r = R
    cq = GemmCfg(TM, TN, 1024, 2048, 8192, "nm", "frag")
    cv = GemmCfg(TM, TN, 1024, 2048, 8192, "mn", "vfrag")
    MT, NT = 2048 // TM, 3 * 4096 // TN
    NWG = gen_gemm(P, name, cq, MT, NT, L.XN, [KA["Wq"], KA["Wk"], KA["Wv"]], None)
    P(f"s_mov_b32 s{r.sE0}, {L.QF}")
    P(f"s_cmp_eq_u32 s48, 1")
    P(f"s_cselect_b32 s{r.sE0}, {L.KF}, s{r.sE0}")
    P(f"s_cmp_eq_u32 s48, 2")
    P(f"s_cselect_b32 s{r.sE0}, {L.VF}, s{r.sE0}")
    P(f"s_lshl_b32 s{r.sT0}, s{r.sROW0}, 13")
    P(f"s_add_u32 s{r.sE0}, s{r.sE0}, s{r.sT0}")
    P(f"s_lshl_b32 s{r.sT0}, s{r.sCOL0}, 6")
    P(f"s_add_u32 s{r.sE0}, s{r.sE0}, s{r.sT0}")
    P(f"s_cmp_eq_u32 s48, 2")
    P(f"s_cbranch_scc1 {name}_v")
    gemm_tile(P, cq, name + "_q")
    epilogue_nm(P, cq, ("frag",))
    P("s_endpgm")
    P.label(f"{name}_v")
    gemm_tile(P, cv, name + "_v")
    epilogue_vfrag(P, cv)
    finish_kernel(P, name)
    return dict(name=name, vgpr=512, accum=256, sgpr=64, lds=cq.lds, grid=NWG)

def gen_plain(P, name, TM, TN, K, N, a_off, lda, b_arg, kind, out_off=None, ldo=2048, res1=None, res2=None, shift=False, o_arg=None):
    r = R
    c = GemmCfg(TM, TN, K, lda, N * 2, "nm", kind, shift=shift)
    MT, NT = 2048 // TM, N // TN
    NWG = gen_gemm(P, name, c, MT, NT, a_off, [b_arg], None, o_arg=o_arg)
    P(f"s_mul_i32 s{r.sT0}, s{r.sROW0}, {ldo}")
    P(f"s_lshl_b32 s{r.sT1}, s{r.sCOL0}, 1")
    P(f"s_add_u32 s{r.sT0}, s{r.sT0}, s{r.sT1}")
    P(f"s_add_u32 s{r.sE0}, s{r.sT0}, {out_off if out_off is not None else 0}")
    P(f"s_add_u32 s{r.sE1}, s{r.sT0}, {res1 if isinstance(res1, int) else 0}")
    P(f"s_add_u32 s{r.sE2}, s{r.sT0}, {res2 if res2 is not None else 0}")
    gemm_tile(P, c, name)
    if kind == "gelu":
        epilogue_nm(P, c, ("gelu", ldo))
    elif kind == "res1":
        epilogue_nm(P, c, ("res1", ldo, res1))
    else:
        epilogue_nm(P, c, ("res2", ldo))
    finish_kernel(P, name)
    nacc = c.FM * c.FN * 16
    return dict(name=name, vgpr=256 + max(nacc, 4), accum=256, sgpr=64, lds=c.lds, grid=NWG)
```

```python
MB = 1 << 20
KB = 1 << 10
WS_SIZE = 256 * MB
_o = 0
def _alloc(n, align=4096):
    global _o
    _o = (_o + align - 1) // align * align
    r = _o
    _o += n
    return r
CTRL  = _alloc(64 * KB)
MEMB  = _alloc(4 * 128 * KB)
QKB   = _alloc(4 * 128 * KB)
OXB   = _alloc(4 * 64 * KB)
PART  = _alloc(4 * 256 * KB)
RING_LO = MEMB
RING_HI = PART + 4 * 256 * KB
XN    = _alloc(4 * MB)
QF    = _alloc(16 * MB)
KF    = _alloc(16 * MB)
VF    = _alloc(16 * MB)
KM    = _alloc(4 * MB)
VMT   = _alloc(4 * MB)
OB    = _alloc(16 * MB)
HB    = _alloc(4 * MB)
YB    = _alloc(4 * MB)
ZB    = _alloc(4 * MB)
GBP   = _alloc(4 * MB + 4 * 2048)
GB    = GBP + 2 * 2048
X1B   = _alloc(4 * MB)
UB    = _alloc(4 * MB)
FB    = _alloc(14 * MB)
DBG   = _alloc(4 * MB)
END   = _o
assert END <= WS_SIZE
if __name__ == "__main__":
    for k, val in list(globals().items()):
        if k.isupper():
            print(k, hex(val) if isinstance(val, int) else val)
```

```python
from asmlib import *
import layout as L
from chain import srd, f32bits

def wave_sum(P, r, t):
    for k in (8, 4, 2, 1):
        P(f"v_add_f32_dpp v{r}, v{r}, v{r} row_ror:{k} row_mask:0xf bank_mask:0xf")
    P(f"v_mov_b32 v{t}, v{r}")
    P(f"v_permlane16_swap_b32 v{r}, v{t}")
    P(f"v_add_f32 v{r}, v{r}, v{t}")
    P(f"v_mov_b32 v{t}, v{r}")
    P(f"v_permlane32_swap_b32 v{r}, v{t}")
    P(f"v_add_f32 v{r}, v{r}, v{t}")

def unpack_bf16(P, src, dst, n):
    for k in range(n):
        P(f"v_lshlrev_b32 v{dst+2*k}, 16, v{src+k}")
        P(f"v_and_b32 v{dst+2*k+1}, 0xffff0000, v{src+k}")

def ln_regs(P, x, n, t):
    N = 64 * n
    P(f"v_add_f32 v{t}, v{x}, v{x+1}")
    for k in range(2, n):
        P(f"v_add_f32 v{t}, v{t}, v{x+k}")
    wave_sum(P, t, t + 1)
    P(f"v_mul_f32 v{t}, {hex(f32bits(1.0/N))}, v{t}")
    for k in range(n):
        P(f"v_sub_f32 v{x+k}, v{x+k}, v{t}")
    P(f"v_mul_f32 v{t+2}, v{x}, v{x}")
    for k in range(1, n):
        P(f"v_fmac_f32 v{t+2}, v{x+k}, v{x+k}")
    wave_sum(P, t + 2, t + 1)
    P(f"v_mov_b32 v{t+3}, {hex(f32bits(1e-5))}")
    P(f"v_fmac_f32 v{t+3}, {hex(f32bits(1.0/N))}, v{t+2}")
    P(f"v_rsq_f32 v{t+3}, v{t+3}")
    for k in range(n):
        P(f"v_mul_f32 v{x+k}, v{x+k}, v{t+3}")

def pack_bf16(P, src, dst, n):
    for k in range(n):
        P(f"v_cvt_pk_bf16_f32 v{dst+k}, v{src+2*k}, v{src+2*k+1}")

def gen_ln(P, name, src, dst1, dst2=None, prep=False):
    NWG = 512
    P.text(f".globl {name}")
    P.text(".p2align 8")
    P.text(f".type {name},@function")
    P.label(name)
    END = f"{name}_end"
    P(f"s_cmp_ge_u32 s2, {NWG}")
    P(f"s_cbranch_scc1 {END}")
    P("s_load_dwordx2 s[22:23], s[0:1], 112")
    if src[0] == "arg":
        P(f"s_load_dwordx2 s[12:13], s[0:1], {src[1]}")
    P("v_and_b32 v1, 63, v0")
    P("v_lshrrev_b32 v2, 6, v0")
    P("s_lshl_b32 s3, s2, 2")
    P("v_add_u32 v2, s3, v2")
    P("v_lshlrev_b32 v2, 11, v2")
    P("v_lshl_add_u32 v2, v1, 4, v2")
    P("s_waitcnt lgkmcnt(0)")
    srd(P, 4, 22, L.WS_SIZE)
    if src[0] == "arg":
        srd(P, 8, 12, 2048 * 2048)
        P("buffer_load_dwordx4 v[4:7], v2, s[8:11], 0 offen")
        P("buffer_load_dwordx4 v[8:11], v2, s[8:11], 0 offen offset:1024")
    else:
        P(f"s_mov_b32 s14, {src[1]}")
        P("buffer_load_dwordx4 v[4:7], v2, s[4:7], s14 offen")
        P("buffer_load_dwordx4 v[8:11], v2, s[4:7], s14 offen offset:1024")
    if prep:
        per = (L.RING_HI - L.RING_LO) // NWG
        assert per % 16 == 0 and per <= 256 * 32
        P("v_mov_b32 v40, -1"); P("v_mov_b32 v41, -1"); P("v_mov_b32 v42, -1"); P("v_mov_b32 v43, -1")
        P(f"s_mul_i32 s15, s2, {per}")
        P(f"s_add_u32 s15, s15, {L.RING_LO}")
        P("v_lshlrev_b32 v44, 4, v0")
        for k in range((per + 4095) // 4096):
            rem = min(per - k * 4096, 4096)
            P(f"v_add_u32 v45, {k*4096}, v44")
            if rem < 4096:
                P(f"v_cmp_gt_u32 vcc, {rem}, v44")
                P(f"v_mov_b32 v46, 0x40000000")
                P(f"v_cndmask_b32 v45, v46, v45, vcc")
            P("buffer_store_dwordx4 v[40:43], v45, s[4:7], s15 offen")
        P("v_mov_b32 v46, 0")
        lz = P.fresh("zp")
        P("s_cmp_ge_u32 s2, 2")
        P(f"s_cbranch_scc1 {lz}")
        P(f"s_mul_i32 s15, s2, {2050*2048}")
        P(f"s_add_u32 s15, s15, {L.GBP}")
        P("v_mov_b32 v48, 0"); P("v_mov_b32 v49, 0"); P("v_mov_b32 v50, 0"); P("v_mov_b32 v51, 0")
        P("buffer_store_dwordx4 v[48:51], v44, s[4:7], s15 offen")
        P.label(lz)
        P("v_lshlrev_b32 v45, 2, v0")
        P("v_cmp_gt_u32 vcc, 32, v0")
        P("v_mov_b32 v47, 0x40000000")
        P("v_cndmask_b32 v45, v47, v45, vcc")
        P("s_lshl_b32 s15, s2, 7")
        P(f"s_add_u32 s15, s15, {L.CTRL}") if L.CTRL else None
        P("buffer_store_dword v46, v45, s[4:7], s15 offen")
    P("s_waitcnt vmcnt(0)" if not prep else "s_waitcnt vmcnt(0)")
    unpack_bf16(P, 4, 12, 8)
    ln_regs(P, 12, 16, 28)
    pack_bf16(P, 12, 4, 8)
    P(f"s_mov_b32 s14, {dst1}")
    P("buffer_store_dwordx4 v[4:7], v2, s[4:7], s14 offen")
    P("buffer_store_dwordx4 v[8:11], v2, s[4:7], s14 offen offset:1024")
    if dst2 is not None:
        unpack_bf16(P, 4, 12, 8)
        ln_regs(P, 12, 16, 28)
        pack_bf16(P, 12, 32, 8)
        P(f"s_mov_b32 s14, {dst2}")
        P("buffer_store_dwordx4 v[32:35], v2, s[4:7], s14 offen")
        P("buffer_store_dwordx4 v[36:39], v2, s[4:7], s14 offen offset:1024")
    P.label(END)
    P("s_endpgm")
    return dict(name=name, vgpr=56, accum=56, sgpr=32, lds=0, grid=NWG)
```

```python
import sys, os
sys.path.insert(0, os.path.dirname(os.path.abspath(__file__)))
from asmlib import *
import layout as L
import chain, small, gemm, attn

HEADER = open(os.path.join(os.path.dirname(os.path.abspath(__file__)), "header.txt")).read()

def build(kernels, launches, out):
    P = Prog()
    infos = []
    P.text('.amdgcn_target "amdgcn-amd-amdhsa--gfx950"')
    P.text(".text")
    for fn, kw in kernels:
        infos.append(fn(P, **kw))
    n, probs = P.fix_hazards()
    for p in probs:
        print("HAZARD:", p)
    txt = HEADER
    if launches == "auto":
        launches = [(i["name"], i.get("grid", 256), 256, i["lds"]) for i in infos]
    for (name, grid, block, lds) in launches:
        txt += f"; @launch kernel={name} grid=({grid},1,1) block=({block},1,1) lds={lds}\n"
    txt += P.render()
    txt += '.section .rodata,"a"\n'
    for inf in infos:
        txt += f""".p2align 6
.amdhsa_kernel {inf['name']}
  .amdhsa_next_free_vgpr {inf['vgpr']}
  .amdhsa_next_free_sgpr {inf['sgpr']}
  .amdhsa_accum_offset {inf['accum']}
  .amdhsa_group_segment_fixed_size 0
  .amdhsa_kernarg_size 120
  .amdhsa_user_sgpr_count 2
  .amdhsa_user_sgpr_kernarg_segment_ptr 1
  .amdhsa_system_sgpr_workgroup_id_x 1
  .amdhsa_float_denorm_mode_32 3
.end_amdhsa_kernel
"""
    open(out, "w").write(txt)
    print(f"wrote {out}: {P.count()} instrs, {n} nops inserted, {len(txt)} bytes")
    return {i['name']: i for i in infos}

if __name__ == "__main__":
    which = sys.argv[1] if len(sys.argv) > 1 else "chaintest"
    out = sys.argv[2] if len(sys.argv) > 2 else "out.s"
    if which == "chaintest":
        st = int(os.environ.get("STAMPS", "0"))
        pb = bool(int(os.environ.get("PBF16", "0")))
        ks = [(small.gen_ln, dict(name="prep_kernel", src=("arg", 0), dst1=L.XN, prep=True)),
              (chain.gen_chain, dict(name="chain_kernel", stamps=bool(st), partbf16=pb, dly=tuple(int(x) for x in os.environ.get("DLY","0,8,0,0").split(","))))]
        build(ks, [("prep_kernel", 512, 256, 0), ("chain_kernel", 256, 256, 131072)], out)
    if which == "full1":
        dly = tuple(int(x) for x in os.environ.get("DLY","2,8,2,8").split(","))
        KA = gemm.KA
        ks = [(small.gen_ln, dict(name="prep_kernel", src=("arg", 0), dst1=L.XN, prep=True)),
              (gemm.gen_qkv, dict(name="qkv_kernel")),
              (chain.gen_chain, dict(name="chain_kernel", partbf16=True, dly=dly)),
              (attn.gen_attn, dict(name="attn_kernel")),
              (gemm.gen_plain, dict(name="wo_kernel", TM=128, TN=64, K=4096, N=1024, a_off=L.OB, lda=8192, b_arg=KA["Wo"], kind="res1", out_off=L.HB, res1="x", o_arg=KA["x"])),
              (small.gen_ln, dict(name="ln2_kernel", src=("ws", L.HB), dst1=L.YB, dst2=L.ZB)),
              (gemm.gen_plain, dict(name="w1_kernel", TM=128, TN=64, K=1024, N=1024, a_off=L.ZB, lda=2048, b_arg=KA["w1"], kind="gelu", out_off=L.GB)),
              (gemm.gen_plain, dict(name="w2_kernel", TM=128, TN=64, K=1024, N=1024, a_off=L.GB, lda=2048, b_arg=KA["w2"], kind="res1", out_off=L.X1B, res1=L.YB, shift=True)),
              (small.gen_ln, dict(name="ln3_kernel", src=("ws", L.X1B), dst1=L.UB)),
              (gemm.gen_plain, dict(name="w3_kernel", TM=128, TN=256, K=1024, N=3584, a_off=L.UB, lda=2048, b_arg=KA["w3"], kind="gelu", out_off=L.FB, ldo=7168)),
              (gemm.gen_plain, dict(name="w4_kernel", TM=128, TN=64, K=3584, N=1024, a_off=L.FB, lda=7168, b_arg=KA["w4"], kind="res2", res1=L.X1B, res2=L.HB, o_arg=KA["out"])),
              ]
        build(ks, "auto", out)
```
